```python
import torch

def _softmax(x, axis=-1):
    return torch.softmax(x, dim=axis)
def _gelu(x):
    return torch.nn.functional.gelu(x, approximate="tanh")
def _silu(x):
    return torch.nn.functional.silu(x)
def _sigmoid(x):
    return torch.sigmoid(x)
def _layernorm(x, axis=-1, eps=1e-5):
    m = x.mean(dim=axis, keepdim=True)
    v = x.var(dim=axis, keepdim=True, unbiased=False)
    return (x - m) / torch.sqrt(v + eps)
def _scatter_add(tgt, idx, src, axis=0):
    return tgt.clone().index_add_(axis, idx, src)
def _segment_sum(src, seg, n):
    out = torch.zeros((n,) + src.shape[1:], dtype=src.dtype)
    return out.index_add_(0, seg, src)
def _pad(x, pw):
    flat = tuple(v for pair in reversed(pw) for v in pair)
    return torch.nn.functional.pad(x, flat)

kernel_name = 'concat_heads__sliding_block__sliding_block__prompt'

def setup_inputs():

    _w = (lambda a: (lambda t: t.to(torch.bfloat16) if t.is_floating_point() else t)(torch.as_tensor(a)))
    def _A_setup():
        B, S, D = 1, 2048, 448
        return {
            "x": _w((lambda *s: torch.randn(*s, dtype=torch.bfloat16) * 0.4)(B, S, D)),
            "wqkv": _w((lambda *s: torch.randn(*s, dtype=torch.bfloat16) * 0.4)(D, 3 * D)),
            "wo": _w((lambda *s: torch.randn(*s, dtype=torch.bfloat16) * 0.05)(D, D)),
        }
    _A_in = _A_setup()

    def _B_setup():
        B, S, D = 1, 2048, 448
        return {
            "x": _w((lambda *s: torch.randn(*s, dtype=torch.bfloat16) * 0.4)(B, S, D)),
            "wqkv": _w((lambda *s: torch.randn(*s, dtype=torch.bfloat16) * 0.4)(D, 3 * D)),
            "wo": _w((lambda *s: torch.randn(*s, dtype=torch.bfloat16) * 0.05)(D, D)),
        }
    _B_in = _B_setup()

    return {
        "A_x": _A_in["x"],
        "A_wqkv": _A_in["wqkv"],
        "A_wo": _A_in["wo"],
        "B_x": _B_in["x"],
        "B_wqkv": _B_in["wqkv"],
        "B_wo": _B_in["wo"],
    }

def reference(A_x, A_wqkv, A_wo, B_x, B_wqkv, B_wo):
    def _A_ref(x, wqkv, wo):
        B, S, D = x.shape
        H = 16; Dh = D // H; W = 256
        qkv = (lambda x, *d: x.permute(*d))((x @ wqkv).reshape(B, S, 3, H, Dh), 2, 0, 3, 1, 4)
        q, k, v = qkv[0], qkv[1], qkv[2]
        scores = torch.einsum("bhqd,bhkd->bhqk", q, k) * (Dh ** -0.5)
        idx = torch.arange(S)
        mask = (idx[:, None] - idx[None, :] >= 0) & (idx[:, None] - idx[None, :] < W)
        scores = torch.where(mask[None, None], scores, -1e9)
        p = _softmax(scores, axis=-1)
        o = torch.einsum("bhqk,bhkd->bhqd", p, v)
        return (lambda x, *d: x.permute(*d))(o, 0, 2, 1, 3).reshape(B, S, D) @ wo

    def _B_ref(x, wqkv, wo):
        B, S, D = x.shape
        H = 16; Dh = D // H; W = 256
        qkv = (lambda x, *d: x.permute(*d))((x @ wqkv).reshape(B, S, 3, H, Dh), 2, 0, 3, 1, 4)
        q, k, v = qkv[0], qkv[1], qkv[2]
        scores = torch.einsum("bhqd,bhkd->bhqk", q, k) * (Dh ** -0.5)
        idx = torch.arange(S)
        mask = (idx[:, None] - idx[None, :] >= 0) & (idx[:, None] - idx[None, :] < W)
        scores = torch.where(mask[None, None], scores, -1e9)
        p = _softmax(scores, axis=-1)
        o = torch.einsum("bhqk,bhkd->bhqd", p, v)
        return (lambda x, *d: x.permute(*d))(o, 0, 2, 1, 3).reshape(B, S, D) @ wo

    a = _A_ref(A_x, A_wqkv, A_wo)
    b = _B_ref(B_x, B_wqkv, B_wo)
    return torch.concatenate([a, b], axis=-1)
```

```python
import re

REG_RE = re.compile(r"^(-|\|)?(?:abs\()?([vas])(?:(\d+)|\[(\d+):(\d+)\])\)?\|?$")

TRANS = ("v_exp_f32", "v_log_f32", "v_rcp_f32", "v_rsq_f32", "v_sqrt_f32", "v_sin_f32", "v_cos_f32",
         "v_rcp_iflag_f32")


def regs_of(tok):
    tok = tok.strip()
    if tok == "vcc":
        return {("s", 106), ("s", 107)}
    if tok == "exec":
        return {("s", 126), ("s", 127)}
    if tok == "m0":
        return {("s", 124)}
    m = REG_RE.match(tok)
    if not m:
        return set()
    f = m.group(2)
    if m.group(3) is not None:
        return {(f, int(m.group(3)))}
    return {(f, i) for i in range(int(m.group(4)), int(m.group(5)) + 1)}


def split_ops(s):
    out, depth, cur = [], 0, ""
    for ch in s:
        if ch in "[(":
            depth += 1
        elif ch in "])":
            depth -= 1
        if ch == "," and depth == 0:
            out.append(cur.strip())
            cur = ""
        else:
            cur += ch
    if cur.strip():
        out.append(cur.strip())
    return out


class Ins:
    __slots__ = ("text", "op", "ops", "kind", "wr", "rd", "srcc", "ab", "passes", "ws", "comment", "lds", "wide_store")

    def __init__(self, text):
        self.text = text
        body = text.split(";")[0].strip()
        parts = body.split(None, 1)
        self.op = parts[0] if parts else ""
        rest = parts[1] if len(parts) > 1 else ""
        ops = split_ops(rest)
        clean = []
        mods = []
        for o in ops:
            toks = o.split()
            if toks:
                clean.append(toks[0])
                mods += toks[1:]
        self.ops = clean
        self.lds = "lds" in mods
        self.wr, self.rd, self.srcc, self.ab = set(), set(), set(), set()
        self.passes = 0
        self.ws = 1
        self.wide_store = False
        op = self.op
        if op.endswith(":") or op.startswith("."):
            self.kind = "label"
            self.ws = 0
        elif op == "s_nop":
            self.kind = "nop"
            self.ws = int(clean[0], 0) + 1
        elif op.startswith("v_mfma"):
            self.kind = "mfma"
            self.wr = regs_of(clean[0])
            self.ab = regs_of(clean[1]) | regs_of(clean[2])
            self.srcc = regs_of(clean[3])
            self.rd = self.ab | self.srcc
            self.passes = 8 if "32x32" in op else 4
        elif op.startswith("v_"):
            self.kind = "valu"
            if op.startswith("v_permlane") and "swap" in op:
                self.wr = regs_of(clean[0]) | regs_of(clean[1])
                self.rd = set(self.wr)
            elif op.startswith("v_cmp"):
                self.wr = regs_of(clean[0])
                for o in clean[1:]:
                    self.rd |= regs_of(o)
            elif op.startswith(("v_add_co", "v_addc_co", "v_sub_co", "v_subb_co")):
                self.wr = regs_of(clean[0]) | regs_of(clean[1])
                for o in clean[2:]:
                    self.rd |= regs_of(o)
            else:
                self.wr = regs_of(clean[0])
                for o in clean[1:]:
                    self.rd |= regs_of(o)
                if op.startswith(("v_fmac", "v_mac")):
                    self.rd |= self.wr
        elif op.startswith("ds_"):
            self.kind = "ds"
            if op.startswith(("ds_read", "ds_bpermute", "ds_permute", "ds_swizzle")):
                self.wr = regs_of(clean[0])
                for o in clean[1:]:
                    self.rd |= regs_of(o)
            else:
                for o in clean:
                    self.rd |= regs_of(o)
        elif op.startswith(("buffer_", "global_")):
            self.kind = "vmem"
            if "load" in op and not self.lds and "load_lds" not in op:
                self.wr = regs_of(clean[0])
                for o in clean[1:]:
                    self.rd |= regs_of(o)
            else:
                for o in clean:
                    self.rd |= regs_of(o)
                if self.lds or "load_lds" in op:
                    self.rd |= {("s", 124)}
                if "store" in op and ("x3" in op or "x4" in op):
                    self.wide_store = True
        elif op.startswith("s_"):
            self.kind = "salu"
            if op.startswith(("s_cmp", "s_cbranch", "s_branch", "s_waitcnt", "s_barrier", "s_endpgm", "s_sleep",
                              "s_setprio")):
                for o in clean:
                    self.rd |= regs_of(o)
            else:
                if clean:
                    self.wr = regs_of(clean[0])
                for o in clean[1:]:
                    self.rd |= regs_of(o)
        else:
            self.kind = "other"


def need(prod, cons):
    n = 0
    if prod.kind == "valu":
        vw = {r for r in prod.wr if r[0] in "va"}
        sw = {r for r in prod.wr if r[0] == "s"}
        if cons.kind == "mfma" and vw & cons.rd:
            n = max(n, 2)
        if cons.kind == "valu":
            if cons.op.startswith(("v_readfirstlane", "v_readlane")) and vw & cons.rd:
                n = max(n, 1)
            if cons.op.startswith("v_permlane") and vw & cons.rd:
                n = max(n, 2)
            if prod.op.startswith(TRANS) and not cons.op.startswith(TRANS) and vw & cons.rd:
                n = max(n, 1)
            if sw & cons.rd:
                n = max(n, 4 if cons.op.startswith(("v_readlane", "v_writelane")) else 2)
            if "dpp" in cons.text or "row_" in cons.text or "quad_perm" in cons.text:
                if vw & cons.rd:
                    n = max(n, 2)
        if cons.kind == "vmem" and sw & cons.rd:
            n = max(n, 5)
    if prod.kind == "mfma":
        big = prod.passes == 8
        if cons.kind == "mfma":
            if prod.wr & cons.ab:
                n = max(n, 12 if big else 8)
            if prod.wr & cons.srcc and not (prod.wr == cons.srcc and prod.passes == cons.passes):
                n = max(n, 10 if big else 6)
            if prod.wr & cons.wr and not (prod.wr == cons.wr):
                n = max(n, 10 if big else 6)
        if cons.kind in ("valu", "ds", "vmem"):
            if prod.wr & (cons.rd | cons.wr):
                n = max(n, 12 if big else 8)
            if cons.kind == "valu" and prod.srcc & cons.wr:
                n = max(n, 7 if big else 3)
    if prod.kind == "salu" and ("s", 124) in prod.wr and cons.kind == "vmem" and ("s", 124) in cons.rd:
        n = max(n, 1)
    if prod.kind == "vmem" and prod.wide_store and cons.kind == "valu":
        data = regs_of(prod.ops[0]) if prod.op.startswith("buffer") else regs_of(prod.ops[1])
        if data & cons.wr:
            n = max(n, 2)
    return n


class Asm:
    def __init__(self):
        self.ins = []

    def __call__(self, text):
        for line in text.strip("\n").split("\n"):
            line = line.strip()
            if not line or line.startswith(";"):
                if line:
                    i = Ins(".comment")
                    i.text = line
                    i.kind = "label"
                    i.ws = 0
                    i.op = ";"
                    self.ins.append(i)
                continue
            self.ins.append(Ins(line))

    def pad(self, n):
        while n > 0:
            k = min(n, 16)
            self(f"s_nop {k-1}")
            n -= k

    def label(self, name):
        self(f"{name}:")

    def finish(self):
        out = []
        for ins in self.ins:
            if ins.kind in ("label", "nop", "other"):
                out.append(ins)
                continue
            dist = 0
            req = 0
            for prev in reversed(out):
                if dist >= 20:
                    break
                if prev.kind != "label":
                    nn = need(prev, ins)
                    if nn > dist:
                        req = max(req, nn - dist)
                dist += prev.ws
            if req > 0:
                out.append(Ins(f"s_nop {req-1}"))
            out.append(ins)
        lines = []
        for i in out:
            if i.kind == "label" and i.op != ";":
                lines.append(i.text)
            else:
                lines.append("    " + i.text)
        return "\n".join(lines) + "\n"
```

```python
import sys, struct, math
sys.path.insert(0, "dev")
from asmlib import Asm

NAME = "concat_heads__sliding_block__sliding_block__prompt"
HEADER = open(f"cdna_kernels/{NAME}.s.ref").read().split("; Override launch geometry")[0]


def f32bits(x):
    return struct.unpack("<I", struct.pack("<f", x))[0]


XBYTES = 2048 * 896
WBYTES = 448 * 2688
WOBYTES = 448 * 896
OUTBYTES = 2048 * 1792
WS_O_BYTES = 2 * 64 * 16 * 2048

W_LDS = 0
X_LDS = 448 * 192
K1_LDS = X_LDS + 8 * 8192
CEXP = (28 ** -0.5) * math.log2(math.e)


def k1():
    a = Asm()
    a(f"""
.globl k1_kernel
.p2align 8
.type k1_kernel,@function
k1_kernel:
s_cmp_ge_u32 s2, 256
s_cbranch_scc1 K1_END
s_load_dwordx8 s[4:11], s[0:1], 0
s_load_dwordx4 s[12:15], s[0:1], 32
s_load_dwordx2 s[16:17], s[0:1], 64
s_and_b32 s36, s2, 7
s_lshr_b32 s37, s2, 3
s_and_b32 s20, s36, 1
s_lshr_b32 s38, s36, 1
s_and_b32 s38, s38, 1
s_lshl_b32 s38, s38, 2
s_and_b32 s39, s37, 3
s_add_u32 s21, s38, s39
s_lshr_b32 s38, s36, 2
s_lshl_b32 s38, s38, 3
s_lshr_b32 s39, s37, 2
s_add_u32 s22, s38, s39
v_lshrrev_b32 v2, 6, v0
v_and_b32 v1, 63, v0
s_nop 0
v_readfirstlane_b32 s23, v2
s_waitcnt lgkmcnt(0)
s_cmp_eq_u32 s20, 0
s_cselect_b32 s24, s4, s10
s_cselect_b32 s25, s5, s11
s_cselect_b32 s28, s6, s12
s_cselect_b32 s29, s7, s13
s_and_b32 s25, s25, 0xffff
s_and_b32 s29, s29, 0xffff
s_mov_b32 s26, {XBYTES}
s_mov_b32 s27, 0x20000
s_mov_b32 s30, {WBYTES}
s_mov_b32 s31, 0x20000
s_mov_b32 s32, s16
s_and_b32 s33, s17, 0xffff
s_mov_b32 s34, {WS_O_BYTES}
s_mov_b32 s35, 0x20000
""")
    for ip, vd in enumerate(("v2", "v3", "v4")):
        a(f"""
v_add_u32 v8, {64*ip}, v1
v_mul_u32_u24 v9, 43691, v8
v_lshrrev_b32 v9, 19, v9
v_mul_u32_u24 v10, 12, v9
v_sub_u32 v10, v8, v10
v_lshrrev_b32 v11, 2, v10
v_and_b32 v10, 3, v10
v_mul_u32_u24 v9, 2688, v9
v_mul_u32_u24 v11, 896, v11
v_lshlrev_b32 v10, 4, v10
v_add3_u32 {vd}, v9, v11, v10
""")
    a("""
s_mul_i32 s36, s22, 56
s_mul_i32 s37, s23, 150528
s_add_u32 s36, s36, s37
s_mul_i32 s37, s23, 10752
""")
    for i in range(11):
        if i == 10:
            a("s_mov_b32 exec_hi, 0")
        a(f"s_add_u32 s38, s36, {(i//3)*16*2688}")
        a(f"s_add_u32 m0, s37, {W_LDS + i*1024}")
        a(f"buffer_load_dwordx4 v{2 + i % 3}, s[28:31], s38 offen lds")
    a("s_mov_b64 exec, -1")
    a("""
v_lshrrev_b32 v8, 3, v1
v_and_b32 v9, 7, v1
v_lshrrev_b32 v10, 4, v1
v_xor_b32 v11, v9, v10
v_mul_u32_u24 v8, 896, v8
v_lshlrev_b32 v12, 4, v11
v_add_u32 v5, v8, v12
v_xor_b32 v11, 4, v11
v_lshlrev_b32 v12, 4, v11
v_add_u32 v6, v8, v12
""")
    a(f"""
s_lshl_b32 s39, s23, 13
s_add_u32 s39, s39, {X_LDS}
v_and_b32 v12, 31, v1
v_lshrrev_b32 v13, 5, v1
v_lshrrev_b32 v14, 1, v12
v_and_b32 v14, 7, v14
v_xor_b32 v14, v14, v13
v_lshlrev_b32 v14, 4, v14
v_lshlrev_b32 v15, 7, v12
v_add3_u32 v7, v15, v14, s39
v_xor_b32 v8, 32, v7
v_xor_b32 v9, 64, v7
v_xor_b32 v10, 96, v7
""")
    a(f"""
v_lshrrev_b32 v13, 5, v1
v_lshlrev_b32 v13, 3, v13
v_and_b32 v14, 15, v1
v_lshrrev_b32 v15, 2, v14
v_add_u32 v13, v13, v15
v_mul_u32_u24 v13, 192, v13
v_lshrrev_b32 v15, 4, v1
v_and_b32 v15, 1, v15
v_lshlrev_b32 v15, 5, v15
v_and_b32 v14, 3, v14
v_lshlrev_b32 v14, 3, v14
v_add3_u32 v11, v13, v15, v14
v_add_u32 v12, 43008, v11
""")
    a("""
v_and_b32 v13, 31, v1
v_lshrrev_b32 v14, 5, v1
v_lshlrev_b32 v14, 2, v14
v_sub_u32 v13, v13, v14
""")
    for r in range(16):
        kr = (r & 3) + 8 * (r >> 2)
        a(f"v_cmp_le_i32 s[{40+2*r}:{41+2*r}], {kr}, v13")
    a(f"s_mov_b32 s72, {f32bits(CEXP)}")

    ACCQ, ACCK, ACCV = 16, 32, 48
    XF = (64, 80)
    WF = (96, 108)

    def x_dma(c, stage):
        for i in range(4):
            a(f"s_add_u32 s38, s73, {i*7168 + c*128}")
            a(f"s_add_u32 m0, s39, {stage*4096 + i*1024}")
            a(f"buffer_load_dwordx4 v{5 + (i & 1)}, s[24:27], s38 offen lds")

    def x_reads(c):
        st = c & 1
        for ks in range(4):
            d = XF[st] + 4 * ks
            a(f"ds_read_b128 v[{d}:{d+3}], v{7+ks} offset:{st*4096}")
        return 4

    def w_reads(step, with_q):
        base = "v11" if step < 14 else "v12"
        k = 16 * (step if step < 14 else step - 14)
        n = 0
        for seg in range(3):
            if seg == 0 and not with_q:
                continue
            d = WF[step & 1] + 4 * seg
            a(f"ds_read_b64_tr_b16 v[{d}:{d+1}], {base} offset:{k*192 + seg*64}")
            a(f"ds_read_b64_tr_b16 v[{d+2}:{d+3}], {base} offset:{(k+4)*192 + seg*64}")
            n += 2
        return n

    def gemm(with_q, first):
        x_dma(0, 0)
        x_dma(1, 1)
        if first:
            a("s_waitcnt vmcnt(8)")
            a("s_barrier")
        a("s_waitcnt vmcnt(4)")
        x_reads(0)
        w_reads(0, with_q)
        for c in range(7):
            for ks in range(4):
                step = 4 * c + ks
                n = 0
                if step + 1 < 28:
                    if ks == 3:
                        a(f"s_waitcnt vmcnt({4 if c + 2 <= 6 else 0})")
                        n += x_reads(c + 1)
                    n += w_reads(step + 1, with_q)
                a(f"s_waitcnt lgkmcnt({n})")
                if ks == 0 and c + 2 <= 6:
                    x_dma(c + 2, c & 1)
                xf = XF[c & 1] + 4 * ks
                wf = WF[step & 1]
                for seg, acc in ((0, ACCQ), (1, ACCK), (2, ACCV)):
                    if seg == 0 and not with_q:
                        continue
                    cc = "0" if step == 0 else f"v[{acc}:{acc+15}]"
                    w = f"v[{wf+4*seg}:{wf+4*seg+3}]"
                    x = f"v[{xf}:{xf+3}]"
                    if seg < 2:
                        a(f"v_mfma_f32_32x32x16_bf16 v[{acc}:{acc+15}], {w}, {x}, {cc}")
                    else:
                        a(f"v_mfma_f32_32x32x16_bf16 v[{acc}:{acc+15}], {x}, {w}, {cc}")

    def pack(src, dst):
        for i in range(8):
            a(f"v_cvt_pk_bf16_f32 v{dst+i}, v{src+2*i}, v{src+2*i+1}")

    def fix_k(kd):
        a("s_mov_b32 exec_lo, 0")
        a(f"v_mov_b32 v{kd+6}, 0")
        a(f"v_mov_b32 v{kd+7}, 0")
        a("s_mov_b64 exec, -1")

    def fix_v(vd):
        a("s_mov_b32 exec_lo, 0x10000000")
        a("s_mov_b32 exec_hi, 0x10000000")
        for i in range(8):
            a(f"v_mov_b32 v{vd+i}, 0x3f803f80")
        a("s_mov_b64 exec, -1")

    HK, HV = 120, 128
    a("s_cmp_eq_u32 s21, 0")
    a("s_cbranch_scc1 K1_T0")
    a("""
s_lshl_b32 s36, s21, 8
s_sub_u32 s36, s36, 256
s_lshl_b32 s37, s23, 5
s_add_u32 s36, s36, s37
s_mul_i32 s73, s36, 896
""")
    gemm(False, True)
    pack(ACCK, HK)
    pack(ACCV, HV)
    fix_k(HK)
    fix_v(HV)
    a("s_add_u32 s73, s73, 229376")
    gemm(True, False)
    a("s_branch K1_JOIN")
    a.label("K1_T0")
    a("""
s_lshl_b32 s37, s23, 5
s_mul_i32 s73, s37, 896
""")
    for i in range(16):
        a(f"v_mov_b32 v{HK+i}, 0")
    a("s_mov_b32 exec_lo, 0")
    a(f"v_mov_b32 v{HK+6}, 0x3f80")
    a("s_mov_b64 exec, -1")
    gemm(True, True)
    a.label("K1_JOIN")
    a.pad(12)
    pack(ACCQ, ACCQ)
    pack(ACCK, ACCK)
    pack(ACCV, ACCV)
    fix_k(ACCK)
    fix_v(ACCV)
    a("s_mov_b32 exec_lo, 0")
    a(f"v_mov_b32 v{ACCQ+6}, 0xdf80")
    a(f"v_mov_b32 v{ACCQ+7}, 0")
    a("s_mov_b64 exec, -1")
    a("""
s_lshl_b32 s36, s23, 11
v_lshlrev_b32 v2, 4, v1
v_add_u32 v2, s36, v2
s_barrier
""")
    a(f"ds_write_b128 v2, v[{HK}:{HK+3}]")
    a(f"ds_write_b128 v2, v[{HK+4}:{HK+7}] offset:1024")
    a(f"ds_write_b128 v2, v[{HV}:{HV+3}] offset:32768")
    a(f"ds_write_b128 v2, v[{HV+4}:{HV+7}] offset:33792")
    a(f"ds_write_b128 v2, v[{ACCK}:{ACCK+3}] offset:16384")
    a(f"ds_write_b128 v2, v[{ACCK+4}:{ACCK+7}] offset:17408")
    a(f"ds_write_b128 v2, v[{ACCV}:{ACCV+3}] offset:49152")
    a(f"ds_write_b128 v2, v[{ACCV+4}:{ACCV+7}] offset:50176")
    a("s_waitcnt lgkmcnt(0)")
    a("s_barrier")
    QF = 16
    O = 24
    KB = 40
    S = 80
    T0, T1, T2 = 72, 73, 74

    def kv_read(j, base_off):
        d = KB + 8 * (j & 3)
        a(f"ds_read_b128 v[{d}:{d+3}], v2 offset:{base_off + j*2048}")
        a(f"ds_read_b128 v[{d+4}:{d+7}], v2 offset:{base_off + j*2048 + 1024}")

    for j in range(3):
        kv_read(j, 0)
    for j in range(9):
        if j + 3 < 9:
            kv_read(j + 3, 0)
        rem = min(9 - j - 1, 3)
        a(f"s_waitcnt lgkmcnt({2*rem})")
        d = KB + 8 * (j & 3)
        s = S + 16 * j
        a(f"v_mfma_f32_32x32x16_bf16 v[{s}:{s+15}], v[{d}:{d+3}], v[{QF}:{QF+3}], 0")
        a(f"v_mfma_f32_32x32x16_bf16 v[{s}:{s+15}], v[{d+4}:{d+7}], v[{QF+4}:{QF+7}], v[{s}:{s+15}]")
    for j in range(3):
        kv_read(j, 32768)
    a(f"v_mov_b32 v{T0}, 0xf0000000")
    for r in range(16):
        a(f"v_cndmask_b32 v{S+r}, v{S+r}, v{T0}, s[{40+2*r}:{41+2*r}]")
    for r in range(16):
        s = S + 128 + r
        a(f"v_cndmask_b32 v{s}, v{T0}, v{s}, s[{40+2*r}:{41+2*r}]")
    a(f"v_max3_f32 v{T1}, v{S}, v{S+1}, v{S+2}")
    i = 3
    while i + 1 < 144:
        a(f"v_max3_f32 v{T1}, v{T1}, v{S+i}, v{S+i+1}")
        i += 2
    if i < 144:
        a(f"v_max_f32 v{T1}, v{T1}, v{S+i}")
    a(f"v_mov_b32 v{T2}, v{T1}")
    a(f"v_permlane32_swap_b32 v{T1}, v{T2}")
    a(f"v_max_f32 v{T1}, v{T1}, v{T2}")
    a(f"v_mul_f32 v{T1}, s72, v{T1}")
    for j in range(9):
        s = S + 16 * j
        for r in range(16):
            a(f"v_fma_f32 v{s+r}, v{s+r}, s72, -v{T1}")
        for r in range(16):
            a(f"v_exp_f32 v{s+r}, v{s+r}")
        pack(s, s)
        if j + 3 < 9:
            pass
        rem = min(9 - j - 1, 2)
        a(f"s_waitcnt lgkmcnt({2*rem})")
        d = KB + 8 * (j & 3)
        cc = "0" if j == 0 else f"v[{O}:{O+15}]"
        a(f"v_mfma_f32_32x32x16_bf16 v[{O}:{O+15}], v[{d}:{d+3}], v[{s}:{s+3}], {cc}")
        a(f"v_mfma_f32_32x32x16_bf16 v[{O}:{O+15}], v[{d+4}:{d+7}], v[{s+4}:{s+7}], v[{O}:{O+15}]")
        if j + 3 < 9:
            kv_read(j + 3, 32768)
    a(f"v_mov_b32 v{T1}, v{O+12}")
    a(f"v_mov_b32 v{T2}, v{O+12}")
    a(f"v_permlane32_swap_b32 v{T1}, v{T2}")
    a(f"v_rcp_f32 v{T2}, v{T2}")
    for r in range(16):
        a(f"v_mul_f32 v{O+r}, v{O+r}, v{T2}")
    pack(O, O)
    a("s_mov_b32 exec_lo, 0")
    a(f"v_mov_b32 v{O+6}, 0")
    a(f"v_mov_b32 v{O+7}, 0")
    a("s_mov_b64 exec, -1")
    a("""
s_lshl_b32 s36, s20, 6
s_lshl_b32 s37, s21, 3
s_add_u32 s36, s36, s37
s_add_u32 s36, s36, s23
s_lshl_b32 s36, s36, 4
s_add_u32 s36, s36, s22
s_lshl_b32 s36, s36, 11
v_lshlrev_b32 v3, 4, v1
""")
    a(f"buffer_store_dwordx4 v[{O}:{O+3}], v3, s[32:35], s36 offen")
    a(f"buffer_store_dwordx4 v[{O+4}:{O+7}], v3, s[32:35], s36 offen offset:1024")
    a.label("K1_END")
    a("s_endpgm")
    return a.finish()


K2_LDS = 452 * 128


def k2():
    a = Asm()
    a(f"""
.globl k2_kernel
.p2align 8
.type k2_kernel,@function
k2_kernel:
s_cmp_ge_u32 s2, 224
s_cbranch_scc1 K2_END
s_load_dwordx2 s[4:5], s[0:1], 16
s_load_dwordx2 s[6:7], s[0:1], 40
s_load_dwordx2 s[8:9], s[0:1], 48
s_load_dwordx2 s[10:11], s[0:1], 64
s_and_b32 s36, s2, 7
s_lshr_b32 s37, s2, 3
s_and_b32 s20, s36, 1
s_lshr_b32 s38, s36, 1
s_lshl_b32 s38, s38, 2
s_and_b32 s39, s37, 3
s_add_u32 s21, s38, s39
s_lshr_b32 s22, s37, 2
v_lshrrev_b32 v2, 6, v0
v_and_b32 v1, 63, v0
s_nop 0
v_readfirstlane_b32 s23, v2
s_waitcnt lgkmcnt(0)
s_cmp_eq_u32 s20, 0
s_cselect_b32 s24, s4, s6
s_cselect_b32 s25, s5, s7
s_and_b32 s25, s25, 0xffff
s_mov_b32 s26, {WOBYTES}
s_mov_b32 s27, 0x20000
s_mov_b32 s28, s8
s_and_b32 s29, s9, 0xffff
s_mov_b32 s30, {OUTBYTES}
s_mov_b32 s31, 0x20000
s_mov_b32 s32, s10
s_and_b32 s33, s11, 0xffff
s_mov_b32 s34, {WS_O_BYTES}
s_mov_b32 s35, 0x20000
v_lshrrev_b32 v8, 3, v1
v_and_b32 v9, 7, v1
v_lshrrev_b32 v10, 4, v1
v_and_b32 v10, 1, v10
v_lshlrev_b32 v10, 2, v10
v_xor_b32 v9, v9, v10
v_mul_u32_u24 v8, 896, v8
v_lshlrev_b32 v9, 4, v9
v_add_u32 v2, v8, v9
s_mul_i32 s36, s23, 100352
s_lshl_b32 s37, s22, 7
s_add_u32 s36, s36, s37
s_mul_i32 s37, s23, 14336
""")
    for i in range(14):
        a(f"s_add_u32 s38, s36, {i*7168}")
        a(f"s_add_u32 m0, s37, {i*1024}")
        a("buffer_load_dwordx4 v2, s[24:27], s38 offen lds")
    BF = 64
    a("""
s_lshl_b32 s36, s20, 6
s_lshl_b32 s37, s21, 2
s_add_u32 s36, s36, s37
s_add_u32 s36, s36, s23
s_lshl_b32 s36, s36, 15
v_lshlrev_b32 v3, 4, v1
""")
    for st in range(32):
        if st % 4 == 0 and st:
            a("s_add_u32 s36, s36, 4096")
        d = BF + 4 * st
        a(f"buffer_load_dwordx4 v[{d}:{d+3}], v3, s[32:35], s36 offen offset:{(st % 4)*1024}")
    a(f"""
v_mov_b32 v4, 0
v_mov_b32 v5, 0
v_lshlrev_b32 v6, 3, v1
ds_write_b64 v6, v[4:5] offset:{448*128}
""")
    a("""
v_lshrrev_b32 v10, 5, v1
v_lshlrev_b32 v10, 2, v10
v_and_b32 v11, 15, v1
v_lshrrev_b32 v12, 2, v11
v_add_u32 v10, v10, v12
v_lshlrev_b32 v10, 7, v10
v_lshrrev_b32 v12, 3, v11
v_lshlrev_b32 v12, 2, v12
v_lshrrev_b32 v13, 4, v1
v_and_b32 v13, 1, v13
v_lshlrev_b32 v13, 1, v13
v_add_u32 v12, v12, v13
v_and_b32 v13, 3, v11
v_lshrrev_b32 v14, 1, v13
v_add_u32 v12, v12, v14
v_lshlrev_b32 v12, 4, v12
v_and_b32 v13, 1, v13
v_lshlrev_b32 v13, 3, v13
v_add3_u32 v8, v10, v12, v13
v_xor_b32 v9, 64, v8
s_waitcnt vmcnt(32) lgkmcnt(0)
s_barrier
""")
    ACC = (16, 32)
    AF = (48, 56)

    def a_reads(st):
        h, f = st >> 1, st & 1
        for nt2 in range(2):
            d = AF[st & 1] + 4 * nt2
            for e in range(2):
                a(f"ds_read_b64_tr_b16 v[{d+2*e}:{d+2*e+1}], v{8+nt2} offset:{(28*h + 16*f + 8*e)*128}")

    a_reads(0)
    for st in range(32):
        n = 0
        if st + 1 < 32:
            a_reads(st + 1)
            n = 4
        a(f"s_waitcnt vmcnt({31-st}) lgkmcnt({n})")
        for nt2 in range(2):
            acc = ACC[nt2]
            cc = "0" if st == 0 else f"v[{acc}:{acc+15}]"
            d = AF[st & 1] + 4 * nt2
            bfr = BF + 4 * st
            a(f"v_mfma_f32_32x32x16_bf16 v[{acc}:{acc+15}], v[{d}:{d+3}], v[{bfr}:{bfr+3}], {cc}")
    a("""
v_and_b32 v10, 31, v1
v_lshrrev_b32 v11, 5, v1
v_mul_u32_u24 v10, 1792, v10
v_lshlrev_b32 v11, 4, v11
v_add_u32 v10, v10, v11
s_lshl_b32 s36, s21, 7
s_lshl_b32 s37, s23, 5
s_add_u32 s36, s36, s37
s_mul_i32 s36, s36, 1792
s_mul_i32 s37, s20, 896
s_add_u32 s36, s36, s37
s_lshl_b32 s37, s22, 7
s_add_u32 s36, s36, s37
""")
    for nt2 in range(2):
        acc = ACC[nt2]
        for i in range(8):
            a(f"v_cvt_pk_bf16_f32 v{acc+i}, v{acc+2*i}, v{acc+2*i+1}")
        for p in range(2):
            b = acc + 4 * p
            a(f"v_permlane32_swap_b32 v{b}, v{b+2}")
            a(f"v_permlane32_swap_b32 v{b+1}, v{b+3}")
            a(f"buffer_store_dwordx4 v[{b}:{b+3}], v10, s[28:31], s36 offen offset:{nt2*64 + p*32}")
    a.label("K2_END")
    a("s_endpgm")
    return a.finish()


def desc(name, vgpr, sgpr):
    acc = (vgpr + 3) // 4 * 4
    return f""".amdhsa_kernel {name}
  .amdhsa_next_free_vgpr {vgpr}
  .amdhsa_next_free_sgpr {sgpr}
  .amdhsa_accum_offset {acc}
  .amdhsa_group_segment_fixed_size 0
  .amdhsa_kernarg_size 72
  .amdhsa_user_sgpr_count 2
  .amdhsa_user_sgpr_kernarg_segment_ptr 1
  .amdhsa_system_sgpr_workgroup_id_x 1
.end_amdhsa_kernel
"""


def main():
    out = HEADER
    out += f"; @launch kernel=k1_kernel grid=(256,1,1) block=(512,1,1) lds={K1_LDS}\n"
    out += f"; @launch kernel=k2_kernel grid=(224,1,1) block=(256,1,1) lds={K2_LDS}\n"
    out += '.amdgcn_target "amdgcn-amd-amdhsa--gfx950"\n.text\n'
    out += k1()
    out += k2()
    out += '.section .rodata,"a"\n.p2align 6\n'
    out += desc("k1_kernel", 224, 80)
    out += ".p2align 6\n"
    out += desc("k2_kernel", 192, 48)
    path = sys.argv[1] if len(sys.argv) > 1 else f"cdna_kernels/{NAME}.s"
    open(path, "w").write(out)


main()
```

```python
import sys, struct, math
sys.path.insert(0, "dev")
from asmlib import Asm

NAME = "concat_heads__sliding_block__sliding_block__prompt"
HEADER = open(f"cdna_kernels/{NAME}.s.ref").read().split("; Override launch geometry")[0]
STAMPS = "--stamp" in sys.argv


def f32bits(x):
    return struct.unpack("<I", struct.pack("<f", x))[0]


XBYTES = 2048 * 896
WBYTES = 448 * 2688
WOBYTES = 448 * 896
OUTBYTES = 2048 * 1792
QKV_BYTES = 2 * 3 * 16 * 131072
O_OFF = QKV_BYTES
WS_BYTES = QKV_BYTES + 2 * 64 * 16 * 2048
STAMP_OFF = 32 << 20
CEXP = (28 ** -0.5) * math.log2(math.e)


def stamp(a, i):
    if STAMPS:
        a("s_waitcnt lgkmcnt(0)")
        a(f"s_memtime s[{80+2*i}:{81+2*i}]")
        a("s_waitcnt lgkmcnt(0)")


def stamp_out(a, n, kidx, nw):
    if STAMPS:
        a("s_waitcnt vmcnt(0)")
        stamp(a, n - 1)
        a("s_mov_b32 s34, 0x4000000")
        a("s_lshl_b32 s36, s2, 3")
        a("s_add_u32 s36, s36, s23")
        a("s_lshl_b32 s36, s36, 6")
        a(f"s_add_u32 s36, s36, {STAMP_OFF + kidx * (1 << 20)}")
        a("v_mov_b32 v3, 0")
        a("s_mov_b64 exec, 1")
        for i in range(n):
            a(f"v_mov_b32 v4, s{80+2*i}")
            a(f"buffer_store_dword v4, v3, s[32:35], s36 offen offset:{4*i}")
            a("s_nop 1")


def pack(a, src, dst):
    for i in range(8):
        a(f"v_cvt_pk_bf16_f32 v{dst+i}, v{src+2*i}, v{src+2*i+1}")


K1_STAGE = 40960
K1_LDS = 4 * K1_STAGE
K1_XOFF = 0
K1_WOFF = 16384


def k1():
    a = Asm()
    a(f"""
.globl k1_kernel
.p2align 8
.type k1_kernel,@function
k1_kernel:
s_cmp_ge_u32 s2, 224
s_cbranch_scc1 K1_END
""")
    stamp(a, 0)
    a(f"""
s_load_dwordx8 s[4:11], s[0:1], 0
s_load_dwordx4 s[12:15], s[0:1], 32
s_load_dwordx2 s[16:17], s[0:1], 64
s_and_b32 s36, s2, 7
s_lshr_b32 s37, s2, 3
s_and_b32 s20, s36, 1
s_lshr_b32 s38, s36, 1
s_lshl_b32 s38, s38, 2
s_and_b32 s39, s37, 3
s_add_u32 s21, s38, s39
s_lshr_b32 s22, s37, 2
s_lshl_b32 s39, s39, 1
s_add_u32 s39, s39, s22
s_cmp_ge_u32 s39, 7
s_cselect_b32 s38, 7, 0
s_sub_u32 s74, s39, s38
v_lshrrev_b32 v2, 6, v0
v_and_b32 v1, 63, v0
s_nop 0
v_readfirstlane_b32 s23, v2
""")
    for ip, vd in enumerate(("v2", "v3", "v4")):
        a(f"""
v_add_u32 v8, {64*ip}, v1
v_mul_u32_u24 v9, 2731, v8
v_lshrrev_b32 v9, 16, v9
v_mul_u32_u24 v10, 24, v9
v_sub_u32 v10, v8, v10
v_lshrrev_b32 v11, 1, v9
v_and_b32 v11, 1, v11
v_lshlrev_b32 v11, 2, v11
v_xor_b32 v10, v10, v11
v_mul_u32_u24 v9, 2688, v9
v_lshlrev_b32 v10, 4, v10
v_add_u32 {vd}, v9, v10
""")
    a("""
v_lshrrev_b32 v8, 3, v1
v_and_b32 v9, 7, v1
v_lshrrev_b32 v10, 4, v1
v_xor_b32 v11, v9, v10
v_mul_u32_u24 v8, 896, v8
v_lshlrev_b32 v12, 4, v11
v_add_u32 v5, v8, v12
v_xor_b32 v11, 4, v11
v_lshlrev_b32 v12, 4, v11
v_add_u32 v6, v8, v12
s_waitcnt lgkmcnt(0)
""")
    a(f"""
s_cmp_eq_u32 s20, 0
s_cselect_b32 s24, s4, s10
s_cselect_b32 s25, s5, s11
s_cselect_b32 s28, s6, s12
s_cselect_b32 s29, s7, s13
s_and_b32 s25, s25, 0xffff
s_and_b32 s29, s29, 0xffff
s_mov_b32 s26, {XBYTES}
s_mov_b32 s27, 0x20000
s_mov_b32 s30, {WBYTES}
s_mov_b32 s31, 0x20000
s_mov_b32 s32, s16
s_and_b32 s33, s17, 0xffff
s_mov_b32 s34, {WS_BYTES}
s_mov_b32 s35, 0x20000
s_lshl_b32 s36, s21, 7
s_lshl_b32 s37, s23, 4
s_add_u32 s36, s36, s37
s_mul_i32 s70, s36, 896
s_mul_i32 s36, s23, 21504
s_mul_i32 s37, s22, 384
s_add_u32 s71, s36, s37
s_lshl_b32 s72, s23, 11
s_mul_i32 s73, s23, 3072
s_add_u32 s73, s73, {K1_WOFF}
""")

    def dma(i):
        st = (i % 4) * K1_STAGE
        a("s_lshl_b32 s36, s74, 7")
        a("s_add_u32 s36, s36, s70")
        a("s_mul_i32 s37, s74, 172032")
        a("s_add_u32 s37, s37, s71")
        for q in range(2):
            a(f"s_add_u32 s38, s36, {q*7168}")
            a(f"s_add_u32 m0, s72, {st + q*1024}")
            a(f"buffer_load_dwordx4 v{5+q}, s[24:27], s38 offen lds")
        for q in range(3):
            a(f"s_add_u32 m0, s73, {st + q*1024}")
            a(f"buffer_load_dwordx4 v{2+q}, s[28:31], s37 offen lds")
        a("s_add_u32 s74, s74, 1")
        a("s_cmp_eq_u32 s74, 7")
        a("s_cselect_b32 s74, 0, s74")

    for i in range(4):
        dma(i)
    a(f"""
s_and_b32 s36, s23, 3
s_lshl_b32 s36, s36, 12
v_and_b32 v12, 31, v1
v_lshrrev_b32 v13, 5, v1
v_lshrrev_b32 v14, 1, v12
v_and_b32 v14, 7, v14
v_xor_b32 v14, v14, v13
v_lshlrev_b32 v14, 4, v14
v_lshlrev_b32 v15, 7, v12
v_add3_u32 v7, v15, v14, s36
v_xor_b32 v8, 32, v7
v_xor_b32 v9, 64, v7
v_xor_b32 v10, 96, v7
""")
    a(f"""
s_lshr_b32 s36, s23, 2
s_mul_i32 s36, s36, 3
v_lshrrev_b32 v13, 5, v1
v_lshlrev_b32 v13, 3, v13
v_and_b32 v14, 15, v1
v_lshrrev_b32 v15, 2, v14
v_add_u32 v13, v13, v15
v_mul_u32_u24 v13, 384, v13
v_lshrrev_b32 v15, 4, v1
v_and_b32 v15, 1, v15
v_lshlrev_b32 v15, 5, v15
v_and_b32 v12, 3, v14
v_lshlrev_b32 v12, 3, v12
v_add3_u32 v13, v13, v15, v12
v_add_u32 v13, {K1_WOFF}, v13
v_lshrrev_b32 v14, 3, v14
""")
    for m in range(3):
        a(f"""
v_add_u32 v12, {m}, v14
v_subrev_u32 v12, v14, v12
v_add_u32 v12, s36, v12
v_xor_b32 v12, v12, v14
v_lshlrev_b32 v12, 6, v12
v_add_u32 v{11+m+100}, v13, v12
""")
    WADDR = (111, 112, 113)
    ACC = (16, 32, 48)
    XF = (64, 68)
    WF = (72, 84)

    def reads(step):
        i, ks = step >> 2, step & 3
        st = (i % 4) * K1_STAGE
        d = XF[step & 1]
        a(f"ds_read_b128 v[{d}:{d+3}], v{7+ks} offset:{st}")
        for m in range(3):
            d = WF[step & 1] + 4 * m
            a(f"ds_read_b64_tr_b16 v[{d}:{d+1}], v{WADDR[m]}_{i%4} offset:{(16*ks)*384}")
            a(f"ds_read_b64_tr_b16 v[{d+2}:{d+3}], v{WADDR[m]}_{i%4} offset:{(16*ks+4)*384}")
        return 7

    for s4 in range(4):
        for m in range(3):
            a(f"v_add_u32 v{114+3*s4+m}, {s4*K1_STAGE}, v{WADDR[m]}")
    for s4 in range(4):
        for ks in range(4):
            a(f"v_add_u32 v{126+4*s4+ks}, {s4*K1_STAGE}, v{7+ks}")

    def reads(step):
        i, ks = step >> 2, step & 3
        s4 = i % 4
        d = XF[step & 1]
        a(f"ds_read_b128 v[{d}:{d+3}], v{126+4*s4+ks}")
        for m in range(3):
            d = WF[step & 1] + 4 * m
            a(f"ds_read_b64_tr_b16 v[{d}:{d+1}], v{114+3*s4+m} offset:{(16*ks)*384}")
            a(f"ds_read_b64_tr_b16 v[{d+2}:{d+3}], v{114+3*s4+m} offset:{(16*ks+4)*384}")
        return 7

    waits = {0: 15, 1: 10, 2: 5, 3: 5, 4: 5, 5: 5, 6: 0}
    a(f"s_waitcnt vmcnt({waits[0]})")
    a("s_barrier")
    stamp(a, 1)
    reads(0)
    for step in range(28):
        i, ks = step >> 2, step & 3
        if ks == 2 and i + 1 <= 6:
            a(f"s_waitcnt vmcnt({waits[i+1]})")
            a("s_barrier")
            if i + 1 >= 2 and i + 3 <= 6:
                dma(i + 3)
        n = 0
        if step + 1 < 28:
            n = reads(step + 1)
        a(f"s_waitcnt lgkmcnt({n})")
        xf = XF[step & 1]
        for m in range(3):
            acc = ACC[m]
            cc = "0" if step == 0 else f"v[{acc}:{acc+15}]"
            wf = WF[step & 1] + 4 * m
            a(f"v_mfma_f32_32x32x16_bf16 v[{acc}:{acc+15}], v[{wf}:{wf+3}], v[{xf}:{xf+3}], {cc}")
    stamp(a, 2)
    a("""
v_lshrrev_b32 v2, 5, v1
v_and_b32 v3, 31, v1
s_lshr_b32 s36, s23, 2
s_mul_i32 s36, s36, 3
s_mul_i32 s37, s22, 6
s_add_u32 s36, s36, s37
s_and_b32 s37, s23, 3
s_lshl_b32 s38, s21, 2
s_add_u32 s37, s37, s38
s_lshl_b32 s37, s37, 11
s_mul_i32 s38, s20, 0x600000
s_add_u32 s37, s37, s38
s_mov_b32 s44, 9363
""")
    for m in range(3):
        acc = ACC[m]
        pack(a, acc, acc)
        a(f"""
s_add_u32 s38, s36, {m}
s_cmp_ge_u32 s38, 14
s_cselect_b32 s39, 1, 0
s_cmp_ge_u32 s38, 28
s_cselect_b32 s39, 2, s39
s_cselect_b32 s40, 8, 256
s_cselect_b32 s41, 64, 16
s_mul_i32 s42, s39, 14
s_sub_u32 s38, s38, s42
s_lshl_b32 s38, s38, 3
s_lshl_b32 s42, s39, 21
s_add_u32 s42, s42, s37
v_mul_u32_u24 v4, s41, v3
""")
        for rg in range(4):
            a(f"""
s_add_u32 s43, s38, {2*rg}
v_add_u32 v5, s43, v2
v_mul_u32_u24 v6, s44, v5
v_lshrrev_b32 v6, 16, v6
v_mul_u32_u24 v7, 7, v6
v_sub_u32 v5, v5, v7
v_and_b32 v7, 6, v5
v_mul_u32_u24 v7, s40, v7
v_and_b32 v5, 1, v5
v_lshl_add_u32 v5, v5, 3, v7
v_lshl_add_u32 v5, v6, 17, v5
v_add_u32 v5, v5, v4
buffer_store_dwordx2 v[{acc+2*rg}:{acc+2*rg+1}], v5, s[32:35], s42 offen
""")
    stamp_out(a, 4, 0, 8)
    a.label("K1_END")
    a("s_endpgm")
    return a.finish()


K2_LDS = 65536


def k2():
    a = Asm()
    a(f"""
.globl k2_kernel
.p2align 8
.type k2_kernel,@function
k2_kernel:
s_cmp_ge_u32 s2, 256
s_cbranch_scc1 K2_END
""")
    stamp(a, 0)
    a(f"""
s_load_dwordx2 s[16:17], s[0:1], 64
s_and_b32 s36, s2, 7
s_lshr_b32 s37, s2, 3
s_and_b32 s20, s36, 1
s_lshr_b32 s38, s36, 1
s_and_b32 s38, s38, 1
s_lshl_b32 s38, s38, 2
s_and_b32 s39, s37, 3
s_add_u32 s21, s38, s39
s_lshr_b32 s38, s36, 2
s_lshl_b32 s38, s38, 3
s_lshr_b32 s39, s37, 2
s_add_u32 s22, s38, s39
v_lshrrev_b32 v2, 6, v0
v_and_b32 v1, 63, v0
v_lshlrev_b32 v3, 4, v1
v_readfirstlane_b32 s23, v2
s_waitcnt lgkmcnt(0)
s_mov_b32 s32, s16
s_and_b32 s33, s17, 0xffff
s_mov_b32 s34, {WS_BYTES}
s_mov_b32 s35, 0x20000
s_mul_i32 s36, s20, 48
s_add_u32 s36, s36, s22
s_lshl_b32 s36, s36, 17
s_lshl_b32 s37, s21, 14
s_add_u32 s36, s36, s37
; Q frag: s36 + w*2048
s_lshl_b32 s37, s23, 11
s_add_u32 s38, s36, s37
buffer_load_dwordx4 v[16:19], v3, s[32:35], s38 offen
buffer_load_dwordx4 v[20:23], v3, s[32:35], s38 offen offset:1024
s_lshl_b32 s37, s23, 12
s_add_u32 s38, s36, s37
s_add_u32 s38, s38, {(2<<20) - 16384}
s_add_u32 s39, s38, {2<<20}
s_cmp_eq_u32 s21, 0
s_cselect_b32 s40, 1, 0
s_cmp_lt_u32 s23, 4
s_cselect_b32 s41, 1, 0
s_and_b32 s40, s40, s41
s_cmp_eq_u32 s40, 1
s_cbranch_scc1 K2_FILL
""")
    for q in range(4):
        a(f"s_add_u32 m0, s37, {q*1024}")
        a(f"s_add_u32 s41, s38, {q*1024}")
        a("buffer_load_dwordx4 v3, s[32:35], s41 offen lds")
    for q in range(4):
        a(f"s_add_u32 m0, s37, {32768 + q*1024}")
        a(f"s_add_u32 s41, s39, {q*1024}")
        a("buffer_load_dwordx4 v3, s[32:35], s41 offen lds")
    a("""
v_mov_b32 v4, 0
v_mov_b32 v5, 0
s_branch K2_PADS
K2_FILL:
""")
    a("""
v_mov_b32 v8, 0
v_mov_b32 v9, 0
v_mov_b32 v10, 0
v_mov_b32 v11, 0
v_add_u32 v12, s37, v3
""")
    for q in range(4):
        a(f"ds_write_b128 v12, v[8:11] offset:{q*1024}")
        a(f"ds_write_b128 v12, v[8:11] offset:{32768 + q*1024}")
    a("""
v_mov_b32 v4, 0x3f80
v_mov_b32 v5, 0
s_waitcnt lgkmcnt(0)
K2_PADS:
""")
    a("""
v_and_b32 v13, 31, v1
v_lshrrev_b32 v14, 5, v1
v_lshlrev_b32 v15, 2, v14
v_sub_u32 v15, v13, v15
""")
    for r in range(16):
        kr = (r & 3) + 8 * (r >> 2)
        a(f"v_cmp_le_i32 s[{40+2*r}:{41+2*r}], {kr}, v15")
    a(f"s_mov_b32 s72, {f32bits(CEXP)}")
    a("""
v_lshlrev_b32 v8, 11, v14
v_lshlrev_b32 v9, 4, v13
v_add3_u32 v8, v8, v9, s37
v_lshlrev_b32 v9, 6, v1
v_add_u32 v9, s37, v9
v_mov_b32 v6, 0x3f80
v_mov_b32 v7, 0
s_lshl_b32 s36, s23, 11
v_add_u32 v2, s36, v3
v_and_b32 v10, 15, v1
v_lshrrev_b32 v11, 2, v10
v_lshl_add_u32 v11, v14, 2, v11
v_lshlrev_b32 v11, 6, v11
v_lshrrev_b32 v12, 4, v1
v_and_b32 v12, 1, v12
v_lshlrev_b32 v12, 5, v12
v_and_b32 v10, 3, v10
v_lshlrev_b32 v10, 3, v10
v_add3_u32 v12, v11, v12, v10
v_add_u32 v12, s36, v12
s_waitcnt vmcnt(0)
ds_write_b64 v8, v[4:5] offset:1544
ds_write_b64 v9, v[6:7] offset:32824
s_mov_b32 exec_lo, 0
v_mov_b32 v22, 0xdf80
v_mov_b32 v23, 0
s_mov_b64 exec, -1
s_waitcnt lgkmcnt(0)
s_barrier
""")
    stamp(a, 1)
    QF = 16
    O = 24
    KB = 40
    S = 80
    T0, T1, T2 = 72, 73, 74

    def k_read(j):
        d = KB + 8 * (j & 3)
        a(f"ds_read_b128 v[{d}:{d+3}], v2 offset:{j*2048}")
        a(f"ds_read_b128 v[{d+4}:{d+7}], v2 offset:{j*2048 + 1024}")

    def v_read(j):
        d = KB + 8 * (j & 3)
        for f in range(2):
            for e in range(2):
                a(f"ds_read_b64_tr_b16 v[{d+4*f+2*e}:{d+4*f+2*e+1}], v12 offset:{32768 + j*2048 + (16*f+8*e)*64}")

    for j in range(3):
        k_read(j)
    for j in range(9):
        if j + 3 < 9:
            k_read(j + 3)
        rem = min(9 - j - 1, 3)
        a(f"s_waitcnt lgkmcnt({2*rem})")
        d = KB + 8 * (j & 3)
        s = S + 16 * j
        a(f"v_mfma_f32_32x32x16_bf16 v[{s}:{s+15}], v[{d}:{d+3}], v[{QF}:{QF+3}], 0")
        a(f"v_mfma_f32_32x32x16_bf16 v[{s}:{s+15}], v[{d+4}:{d+7}], v[{QF+4}:{QF+7}], v[{s}:{s+15}]")
    stamp(a, 2)
    for j in range(3):
        v_read(j)
    a(f"v_mov_b32 v{T0}, 0xf0000000")
    for r in range(16):
        a(f"v_cndmask_b32 v{S+r}, v{S+r}, v{T0}, s[{40+2*r}:{41+2*r}]")
    for r in range(16):
        s = S + 128 + r
        a(f"v_cndmask_b32 v{s}, v{T0}, v{s}, s[{40+2*r}:{41+2*r}]")
    a(f"v_max3_f32 v{T1}, v{S}, v{S+1}, v{S+2}")
    i = 3
    while i + 1 < 144:
        a(f"v_max3_f32 v{T1}, v{T1}, v{S+i}, v{S+i+1}")
        i += 2
    if i < 144:
        a(f"v_max_f32 v{T1}, v{T1}, v{S+i}")
    a(f"v_mov_b32 v{T2}, v{T1}")
    a(f"v_permlane32_swap_b32 v{T1}, v{T2}")
    a(f"v_max_f32 v{T1}, v{T1}, v{T2}")
    a(f"v_mul_f32 v{T1}, s72, v{T1}")
    for j in range(9):
        s = S + 16 * j
        for r in range(16):
            a(f"v_fma_f32 v{s+r}, v{s+r}, s72, -v{T1}")
        for r in range(16):
            a(f"v_exp_f32 v{s+r}, v{s+r}")
        pack(a, s, s)
        rem = min(9 - j - 1, 2)
        a(f"s_waitcnt lgkmcnt({4*rem})")
        d = KB + 8 * (j & 3)
        cc = "0" if j == 0 else f"v[{O}:{O+15}]"
        a(f"v_mfma_f32_32x32x16_bf16 v[{O}:{O+15}], v[{d}:{d+3}], v[{s}:{s+3}], {cc}")
        a(f"v_mfma_f32_32x32x16_bf16 v[{O}:{O+15}], v[{d+4}:{d+7}], v[{s+4}:{s+7}], v[{O}:{O+15}]")
        if j + 3 < 9:
            v_read(j + 3)
    stamp(a, 3)
    a(f"v_mov_b32 v{T1}, v{O+12}")
    a(f"v_mov_b32 v{T2}, v{O+12}")
    a(f"v_permlane32_swap_b32 v{T1}, v{T2}")
    a(f"v_rcp_f32 v{T2}, v{T2}")
    for r in range(16):
        a(f"v_mul_f32 v{O+r}, v{O+r}, v{T2}")
    pack(a, O, O)
    a("s_mov_b32 exec_lo, 0")
    a(f"v_mov_b32 v{O+6}, 0")
    a(f"v_mov_b32 v{O+7}, 0")
    a("s_mov_b64 exec, -1")
    a(f"""
s_lshl_b32 s36, s20, 6
s_lshl_b32 s37, s21, 3
s_add_u32 s36, s36, s37
s_add_u32 s36, s36, s23
s_lshl_b32 s36, s36, 4
s_add_u32 s36, s36, s22
s_lshl_b32 s36, s36, 11
s_add_u32 s36, s36, {O_OFF}
""")
    a(f"buffer_store_dwordx4 v[{O}:{O+3}], v3, s[32:35], s36 offen")
    a(f"buffer_store_dwordx4 v[{O+4}:{O+7}], v3, s[32:35], s36 offen offset:1024")
    stamp_out(a, 5, 1, 8)
    a.label("K2_END")
    a("s_endpgm")
    return a.finish()


K3_LDS = 452 * 128


def k3():
    a = Asm()
    a(f"""
.globl k3_kernel
.p2align 8
.type k3_kernel,@function
k3_kernel:
s_cmp_ge_u32 s2, 224
s_cbranch_scc1 K3_END
""")
    stamp(a, 0)
    a(f"""
s_load_dwordx2 s[4:5], s[0:1], 16
s_load_dwordx2 s[6:7], s[0:1], 40
s_load_dwordx2 s[8:9], s[0:1], 48
s_load_dwordx2 s[10:11], s[0:1], 64
s_and_b32 s36, s2, 7
s_lshr_b32 s37, s2, 3
s_and_b32 s20, s36, 1
s_lshr_b32 s38, s36, 1
s_lshl_b32 s38, s38, 2
s_and_b32 s39, s37, 3
s_add_u32 s21, s38, s39
s_lshr_b32 s22, s37, 2
v_lshrrev_b32 v2, 6, v0
v_and_b32 v1, 63, v0
s_nop 0
v_readfirstlane_b32 s23, v2
s_waitcnt lgkmcnt(0)
s_cmp_eq_u32 s20, 0
s_cselect_b32 s24, s4, s6
s_cselect_b32 s25, s5, s7
s_and_b32 s25, s25, 0xffff
s_mov_b32 s26, {WOBYTES}
s_mov_b32 s27, 0x20000
s_mov_b32 s28, s8
s_and_b32 s29, s9, 0xffff
s_mov_b32 s30, {OUTBYTES}
s_mov_b32 s31, 0x20000
s_mov_b32 s32, s10
s_and_b32 s33, s11, 0xffff
s_mov_b32 s34, {WS_BYTES}
s_mov_b32 s35, 0x20000
v_lshrrev_b32 v8, 3, v1
v_and_b32 v9, 7, v1
v_lshrrev_b32 v10, 4, v1
v_and_b32 v10, 1, v10
v_lshlrev_b32 v10, 2, v10
v_xor_b32 v9, v9, v10
v_mul_u32_u24 v8, 896, v8
v_lshlrev_b32 v9, 4, v9
v_add_u32 v2, v8, v9
s_mul_i32 s36, s23, 100352
s_lshl_b32 s37, s22, 7
s_add_u32 s36, s36, s37
s_mul_i32 s37, s23, 14336
""")
    for i in range(14):
        a(f"s_add_u32 s38, s36, {i*7168}")
        a(f"s_add_u32 m0, s37, {i*1024}")
        a("buffer_load_dwordx4 v2, s[24:27], s38 offen lds")
    BF = 64
    a(f"""
s_lshl_b32 s36, s20, 6
s_lshl_b32 s37, s21, 2
s_add_u32 s36, s36, s37
s_add_u32 s36, s36, s23
s_lshl_b32 s36, s36, 15
s_add_u32 s36, s36, {O_OFF}
v_lshlrev_b32 v3, 4, v1
""")
    for st in range(32):
        if st % 4 == 0 and st:
            a("s_add_u32 s36, s36, 4096")
        d = BF + 4 * st
        a(f"buffer_load_dwordx4 v[{d}:{d+3}], v3, s[32:35], s36 offen offset:{(st % 4)*1024}")
    a(f"""
v_mov_b32 v4, 0
v_mov_b32 v5, 0
v_lshlrev_b32 v6, 3, v1
ds_write_b64 v6, v[4:5] offset:{448*128}
""")
    a("""
v_lshrrev_b32 v10, 5, v1
v_lshlrev_b32 v10, 2, v10
v_and_b32 v11, 15, v1
v_lshrrev_b32 v12, 2, v11
v_add_u32 v10, v10, v12
v_lshlrev_b32 v10, 7, v10
v_lshrrev_b32 v12, 3, v11
v_lshlrev_b32 v12, 2, v12
v_lshrrev_b32 v13, 4, v1
v_and_b32 v13, 1, v13
v_lshlrev_b32 v13, 1, v13
v_add_u32 v12, v12, v13
v_and_b32 v13, 3, v11
v_lshrrev_b32 v14, 1, v13
v_add_u32 v12, v12, v14
v_lshlrev_b32 v12, 4, v12
v_and_b32 v13, 1, v13
v_lshlrev_b32 v13, 3, v13
v_add3_u32 v8, v10, v12, v13
v_xor_b32 v9, 64, v8
s_waitcnt vmcnt(32) lgkmcnt(0)
s_barrier
""")
    stamp(a, 1)
    ACC = (16, 32)
    AF = (48, 56)

    def a_reads(st):
        h, f = st >> 1, st & 1
        for nt2 in range(2):
            d = AF[st & 1] + 4 * nt2
            for e in range(2):
                a(f"ds_read_b64_tr_b16 v[{d+2*e}:{d+2*e+1}], v{8+nt2} offset:{(28*h + 16*f + 8*e)*128}")

    a_reads(0)
    for st in range(32):
        n = 0
        if st + 1 < 32:
            a_reads(st + 1)
            n = 4
        a(f"s_waitcnt vmcnt({31-st}) lgkmcnt({n})")
        for nt2 in range(2):
            acc = ACC[nt2]
            cc = "0" if st == 0 else f"v[{acc}:{acc+15}]"
            d = AF[st & 1] + 4 * nt2
            bfr = BF + 4 * st
            a(f"v_mfma_f32_32x32x16_bf16 v[{acc}:{acc+15}], v[{d}:{d+3}], v[{bfr}:{bfr+3}], {cc}")
    stamp(a, 2)
    a("""
v_and_b32 v10, 31, v1
v_lshrrev_b32 v11, 5, v1
v_mul_u32_u24 v10, 1792, v10
v_lshlrev_b32 v11, 4, v11
v_add_u32 v10, v10, v11
s_lshl_b32 s36, s21, 7
s_lshl_b32 s37, s23, 5
s_add_u32 s36, s36, s37
s_mul_i32 s36, s36, 1792
s_mul_i32 s37, s20, 896
s_add_u32 s36, s36, s37
s_lshl_b32 s37, s22, 7
s_add_u32 s36, s36, s37
""")
    for nt2 in range(2):
        acc = ACC[nt2]
        pack(a, acc, acc)
        for p in range(2):
            b = acc + 4 * p
            a(f"v_permlane32_swap_b32 v{b}, v{b+2}")
            a(f"v_permlane32_swap_b32 v{b+1}, v{b+3}")
            a(f"buffer_store_dwordx4 v[{b}:{b+3}], v10, s[28:31], s36 offen offset:{nt2*64 + p*32}")
    stamp_out(a, 4, 2, 4)
    a.label("K3_END")
    a("s_endpgm")
    return a.finish()


def desc(name, vgpr, sgpr):
    acc = (vgpr + 3) // 4 * 4
    return f""".amdhsa_kernel {name}
  .amdhsa_next_free_vgpr {vgpr}
  .amdhsa_next_free_sgpr {sgpr}
  .amdhsa_accum_offset {acc}
  .amdhsa_group_segment_fixed_size 0
  .amdhsa_kernarg_size 72
  .amdhsa_user_sgpr_count 2
  .amdhsa_user_sgpr_kernarg_segment_ptr 1
  .amdhsa_system_sgpr_workgroup_id_x 1
.end_amdhsa_kernel
"""


def main():
    out = HEADER
    out += f"; @launch kernel=k1_kernel grid=(224,1,1) block=(512,1,1) lds={K1_LDS}\n"
    out += f"; @launch kernel=k2_kernel grid=(256,1,1) block=(512,1,1) lds={K2_LDS}\n"
    out += f"; @launch kernel=k3_kernel grid=(224,1,1) block=(256,1,1) lds={K3_LDS}\n"
    out += '.amdgcn_target "amdgcn-amd-amdhsa--gfx950"\n.text\n'
    out += k1()
    out += k2()
    out += k3()
    out += '.section .rodata,"a"\n.p2align 6\n'
    out += desc("k1_kernel", 144, 102)
    out += ".p2align 6\n"
    out += desc("k2_kernel", 224, 102)
    out += ".p2align 6\n"
    out += desc("k3_kernel", 192, 102)
    args = [x for x in sys.argv[1:] if not x.startswith("--")]
    path = args[0] if args else f"cdna_kernels/{NAME}.s"
    open(path, "w").write(out)


main()
```

```python
import sys, struct, math
sys.path.insert(0, "dev")
from asmlib import Asm

NAME = "concat_heads__sliding_block__sliding_block__prompt"
HEADER = open(f"cdna_kernels/{NAME}.s.ref").read().split("; Override launch geometry")[0]
STAMPS = "--stamp" in sys.argv
RR = [int(x[4:]) for x in sys.argv if x.startswith("--r=")]
RR = RR[0] if RR else 3
if RR == 1:
    ROT = "s_mov_b32 s74, 0"
elif RR == 2:
    ROT = "s_add_u32 s39, s39, s22\ns_and_b32 s39, s39, 1\ns_mul_i32 s74, s39, 3"
elif RR == 3:
    ROT = "s_add_u32 s39, s39, s22\ns_mul_i32 s38, s39, 86\ns_lshr_b32 s38, s38, 8\ns_mul_i32 s38, s38, 3\ns_sub_u32 s39, s39, s38\ns_lshl_b32 s74, s39, 1"
elif RR == 4:
    ROT = "s_add_u32 s39, s39, s22\ns_and_b32 s39, s39, 3\ns_mul_i32 s74, s39, 7\ns_lshr_b32 s74, s74, 2"
else:
    ROT = "s_lshl_b32 s39, s39, 1\ns_add_u32 s39, s39, s22\ns_cmp_ge_u32 s39, 7\ns_cselect_b32 s38, 7, 0\ns_sub_u32 s74, s39, s38"


def f32bits(x):
    return struct.unpack("<I", struct.pack("<f", x))[0]


XBYTES = 2048 * 896
WBYTES = 448 * 2688
WOBYTES = 448 * 896
OUTBYTES = 2048 * 1792
RT_STRIDE = 336 * 256
QKV_BYTES = 2 * 64 * RT_STRIDE
O_OFF = QKV_BYTES + 4096
O_RT = 56 * 512
WS_BYTES = O_OFF + 2 * 64 * O_RT
STAMP_OFF = 32 << 20
CEXP = (28 ** -0.5) * math.log2(math.e)


def stamp(a, i):
    if STAMPS:
        a("s_waitcnt lgkmcnt(0)")
        a(f"s_memtime s[{80+2*i}:{81+2*i}]")
        a("s_waitcnt lgkmcnt(0)")


def stamp_out(a, n, kidx, last=None):
    if STAMPS:
        a("s_waitcnt vmcnt(0)")
        stamp(a, n - 1 if last is None else last)
        a("s_mov_b32 s34, 0x4000000")
        a("s_lshl_b32 s36, s2, 3")
        a("s_add_u32 s36, s36, s23")
        a("s_lshl_b32 s36, s36, 6")
        a(f"s_add_u32 s36, s36, {STAMP_OFF + kidx * (1 << 20)}")
        a("v_mov_b32 v3, 0")
        a("s_mov_b64 exec, 1")
        for i in range(n):
            a(f"v_mov_b32 v4, s{80+2*i}")
            a(f"buffer_store_dword v4, v3, s[32:35], s36 offen offset:{4*i}")
            a("s_nop 1")


def pack(a, src, dst):
    for i in range(8):
        a(f"v_cvt_pk_bf16_f32 v{dst+i}, v{src+2*i}, v{src+2*i+1}")


K1_STAGE = 40960
K1_LDS = 4 * K1_STAGE
K1_WOFF = 16384


def k1():
    a = Asm()
    a(f"""
.globl k1_kernel
.p2align 8
.type k1_kernel,@function
k1_kernel:
s_cmp_ge_u32 s2, 224
s_cbranch_scc1 K1_END
""")
    stamp(a, 0)
    a(f"""
s_load_dwordx8 s[4:11], s[0:1], 0
s_load_dwordx4 s[12:15], s[0:1], 32
s_load_dwordx2 s[16:17], s[0:1], 64
s_and_b32 s36, s2, 7
s_lshr_b32 s37, s2, 3
s_and_b32 s20, s36, 1
s_lshr_b32 s38, s36, 1
s_lshl_b32 s38, s38, 2
s_and_b32 s39, s37, 3
s_add_u32 s21, s38, s39
s_lshr_b32 s22, s37, 2
{ROT}
v_lshrrev_b32 v2, 6, v0
v_and_b32 v1, 63, v0
s_nop 0
v_readfirstlane_b32 s23, v2
s_cmp_lt_u32 s23, 4
s_cbranch_scc1 K1_COMPUTE
s_sub_u32 s76, s23, 4
""")
    for ip, vd in enumerate(("v2", "v3", "v4")):
        a(f"""
v_add_u32 v8, {64*ip}, v1
v_mul_u32_u24 v9, 2731, v8
v_lshrrev_b32 v9, 16, v9
v_mul_u32_u24 v10, 24, v9
v_sub_u32 v10, v8, v10
v_lshrrev_b32 v11, 1, v9
v_and_b32 v11, 1, v11
v_lshlrev_b32 v11, 2, v11
v_xor_b32 v10, v10, v11
v_mul_u32_u24 v9, 2688, v9
v_lshlrev_b32 v10, 4, v10
v_add_u32 {vd}, v9, v10
""")
    a("""
v_lshrrev_b32 v8, 3, v1
v_and_b32 v9, 7, v1
v_lshrrev_b32 v10, 4, v1
v_xor_b32 v11, v9, v10
v_mul_u32_u24 v8, 896, v8
v_lshlrev_b32 v12, 4, v11
v_add_u32 v5, v8, v12
v_xor_b32 v11, 4, v11
v_lshlrev_b32 v12, 4, v11
v_add_u32 v6, v8, v12
s_lshl_b32 s36, s21, 7
s_lshl_b32 s37, s76, 5
s_add_u32 s36, s36, s37
s_mul_i32 s70, s36, 896
s_mul_i32 s36, s76, 43008
s_mul_i32 s37, s22, 384
s_add_u32 s71, s36, s37
s_lshl_b32 s72, s76, 12
s_mul_i32 s73, s76, 6144
s_waitcnt lgkmcnt(0)
""")
    a(f"""
s_add_u32 s73, s73, {K1_WOFF}
s_cmp_eq_u32 s20, 0
s_cselect_b32 s24, s4, s10
s_cselect_b32 s25, s5, s11
s_cselect_b32 s28, s6, s12
s_cselect_b32 s29, s7, s13
s_and_b32 s25, s25, 0xffff
s_and_b32 s29, s29, 0xffff
s_mov_b32 s26, {XBYTES}
s_mov_b32 s27, 0x20000
s_mov_b32 s30, {WBYTES}
s_mov_b32 s31, 0x20000
""")

    def dma(i):
        st = (i % 4) * K1_STAGE
        a("s_lshl_b32 s36, s74, 7\ns_add_u32 s36, s36, s70\ns_mul_i32 s37, s74, 172032\ns_add_u32 s37, s37, s71\n"
          "s_add_u32 s74, s74, 1\ns_cmp_eq_u32 s74, 7\ns_cselect_b32 s74, 0, s74")
        for q in range(6):
            a(f"s_add_u32 s38, s37, {(q//3)*8*2688}\ns_add_u32 m0, s73, {st + q*1024}\n"
              f"buffer_load_dwordx4 v{2+q%3}, s[28:31], s38 offen lds")
        for q in range(4):
            a(f"s_add_u32 s38, s36, {q*7168}\ns_add_u32 m0, s72, {st + q*1024}\n"
              f"buffer_load_dwordx4 v{5+(q&1)}, s[24:27], s38 offen lds")

    dma(0)
    dma(1)
    for i in range(7):
        a(f"s_waitcnt vmcnt({10 if i < 6 else 0})")
        a("s_barrier")
        if i + 2 <= 6:
            dma(i + 2)
    a("s_endpgm")
    a.label("K1_COMPUTE")
    a(f"""
s_and_b32 s36, s23, 1
s_lshl_b32 s36, s36, 13
v_and_b32 v12, 31, v1
v_lshrrev_b32 v13, 5, v1
v_lshrrev_b32 v14, 1, v12
v_and_b32 v14, 7, v14
v_xor_b32 v14, v14, v13
v_lshlrev_b32 v14, 4, v14
v_lshlrev_b32 v15, 7, v12
v_add3_u32 v7, v15, v14, s36
v_xor_b32 v8, 32, v7
v_xor_b32 v9, 64, v7
v_xor_b32 v10, 96, v7
""")
    a(f"""
s_lshr_b32 s36, s23, 1
s_mul_i32 s36, s36, 3
v_lshrrev_b32 v13, 5, v1
v_lshlrev_b32 v13, 3, v13
v_and_b32 v14, 15, v1
v_lshrrev_b32 v15, 2, v14
v_add_u32 v13, v13, v15
v_mul_u32_u24 v13, 384, v13
v_lshrrev_b32 v15, 4, v1
v_and_b32 v15, 1, v15
v_lshlrev_b32 v15, 5, v15
v_and_b32 v12, 3, v14
v_lshlrev_b32 v12, 3, v12
v_add3_u32 v13, v13, v15, v12
v_add_u32 v13, {K1_WOFF}, v13
v_lshrrev_b32 v14, 3, v14
""")
    WA, XA = 160, 172
    for m in range(3):
        a(f"""
s_add_u32 s37, s36, {m}
v_xor_b32 v12, s37, v14
v_lshlrev_b32 v12, 6, v12
v_add_u32 v11, v13, v12
""")
        for s4 in range(4):
            a(f"v_add_u32 v{WA+3*s4+m}, {s4*K1_STAGE}, v11")
    for s4 in range(4):
        for ks in range(4):
            a(f"v_add_u32 v{XA+4*s4+ks}, {s4*K1_STAGE}, v{7+ks}")
    a(f"""
s_waitcnt lgkmcnt(0)
s_mov_b32 s32, s16
s_and_b32 s33, s17, 0xffff
s_mov_b32 s34, {WS_BYTES}
s_mov_b32 s35, 0x20000
v_lshlrev_b32 v2, 3, v1
s_lshl_b32 s36, s20, 6
s_lshl_b32 s37, s21, 2
s_add_u32 s36, s36, s37
s_and_b32 s37, s23, 1
s_lshl_b32 s37, s37, 1
s_add_u32 s36, s36, s37
s_mul_i32 s36, s36, {RT_STRIDE}
s_lshr_b32 s37, s23, 1
s_mul_i32 s37, s37, 3
s_mul_i32 s38, s22, 6
s_add_u32 s37, s37, s38
s_lshl_b32 s37, s37, 11
s_add_u32 s36, s36, s37
""")
    ACC = 16
    XF = (112, 120)
    WF = (128, 140)

    def read_list(step):
        i, ks = step >> 2, step & 3
        s4 = i % 4
        L = []
        d = XF[step & 1]
        L.append(f"ds_read_b128 v[{d}:{d+3}], v{XA+4*s4+ks}")
        for m in range(3):
            dw = WF[step & 1] + 4 * m
            L.append(f"ds_read_b64_tr_b16 v[{dw}:{dw+1}], v{WA+3*s4+m} offset:{(16*ks)*384}")
            L.append(f"ds_read_b64_tr_b16 v[{dw+2}:{dw+3}], v{WA+3*s4+m} offset:{(16*ks+4)*384}")
        L.append(f"ds_read_b128 v[{d+4}:{d+7}], v{XA+4*s4+ks} offset:4096")
        return L

    a("s_barrier")
    stamp(a, 1)
    for r in read_list(0):
        a(r)
    for step in range(28):
        i, ks = step >> 2, step & 3
        fill = []
        if ks == 2 and i + 1 <= 6:
            a("s_barrier")
        if step + 1 < 28:
            fill = read_list(step + 1)
        a("s_waitcnt lgkmcnt(0)")
        order = [(0, 0), (0, 1), (0, 2), (1, 0), (1, 1), (1, 2)]
        for n, (aa, m) in enumerate(order):
            acc = ACC + (aa * 3 + m) * 16
            cc = "0" if step == 0 else f"v[{acc}:{acc+15}]"
            wf = WF[step & 1] + 4 * m
            xf = XF[step & 1] + 4 * aa
            a(f"v_mfma_f32_32x32x16_bf16 v[{acc}:{acc+15}], v[{wf}:{wf+3}], v[{xf}:{xf+3}], {cc}")
            for _ in range(2):
                if fill:
                    a(fill.pop(0))
        for x in fill:
            a(x)
    stamp(a, 2)
    for aa in range(2):
        if aa:
            a(f"s_add_u32 s36, s36, {RT_STRIDE}")
        for m in range(3):
            acc = ACC + (aa * 3 + m) * 16
            pack(a, acc, acc)
            a(f"s_add_u32 s37, s36, {m*2048}")
            for rg in range(4):
                a(f"buffer_store_dwordx2 v[{acc+2*rg}:{acc+2*rg+1}], v2, s[32:35], s37 offen offset:{rg*512}")
    stamp_out(a, 4, 0)
    a.label("K1_END")
    a("s_endpgm")
    return a.finish()


K2_LDS = 65536


def k2():
    a = Asm()
    a(f"""
.globl k2_kernel
.p2align 8
.type k2_kernel,@function
k2_kernel:
s_cmp_ge_u32 s2, 256
s_cbranch_scc1 K2_END
""")
    stamp(a, 0)
    a(f"""
s_load_dwordx2 s[16:17], s[0:1], 64
s_load_dwordx2 s[4:5], s[0:1], 16
s_load_dwordx2 s[6:7], s[0:1], 40
s_and_b32 s36, s2, 7
s_lshr_b32 s37, s2, 3
s_and_b32 s20, s36, 1
s_and_b32 s38, s36, 6
s_and_b32 s39, s37, 1
s_add_u32 s21, s38, s39
s_lshr_b32 s22, s37, 1
v_lshrrev_b32 v2, 6, v0
v_and_b32 v1, 63, v0
v_and_b32 v13, 31, v1
v_readfirstlane_b32 s23, v2
v_lshrrev_b32 v14, 5, v1
v_lshrrev_b32 v8, 4, v1
v_and_b32 v9, 15, v1
v_lshlrev_b32 v10, 1, v8
v_xor_b32 v10, v9, v10
v_lshlrev_b32 v10, 4, v10
v_lshl_add_u32 v4, v8, 8, v10
v_xor_b32 v5, 0x80, v4
v_add_u32 v5, 0x400, v5
v_lshlrev_b32 v6, 3, v13
v_lshl_add_u32 v6, v14, 9, v6
s_waitcnt lgkmcnt(0)
s_mov_b32 s32, s16
s_and_b32 s33, s17, 0xffff
s_mov_b32 s34, {WS_BYTES}
s_mov_b32 s35, 0x20000
; s36 = ((b*64 + 8t)*336 + 7h)*256
s_lshl_b32 s36, s20, 6
s_lshl_b32 s37, s21, 3
s_add_u32 s36, s36, s37
s_mul_i32 s36, s36, {RT_STRIDE}
s_mul_i32 s37, s22, 1792
s_add_u32 s36, s36, s37
s_mul_i32 s37, s23, {2*RT_STRIDE}
s_add_u32 s38, s36, s37
s_sub_u32 s38, s38, {8*RT_STRIDE - 28672}
s_lshl_b32 s37, s23, 12
s_cmp_eq_u32 s21, 0
s_cselect_b32 s40, 1, 0
s_cmp_lt_u32 s23, 4
s_cselect_b32 s41, 1, 0
s_and_b32 s75, s40, s41
s_cmp_eq_u32 s75, 1
s_cbranch_scc1 K2_FILL
""")
    for u in range(2):
        for q in range(2):
            a(f"s_add_u32 m0, s37, {u*2048 + q*1024}")
            a(f"s_add_u32 s41, s38, {u*RT_STRIDE}")
            a(f"buffer_load_dwordx4 v{4+q}, s[32:35], s41 offen lds")
    a("s_branch K2_Q")
    a.label("K2_FILL")
    a("""
v_mov_b32 v8, 0
v_mov_b32 v9, 0
v_mov_b32 v10, 0
v_mov_b32 v11, 0
v_lshlrev_b32 v12, 4, v1
v_add_u32 v12, s37, v12
""")
    for q in range(4):
        a(f"ds_write_b128 v12, v[8:11] offset:{q*1024}")
        a(f"ds_write_b128 v12, v[8:11] offset:{32768 + q*1024}")
    a("s_waitcnt lgkmcnt(0)")
    a.label("K2_Q")
    a(f"""
s_mul_i32 s39, s23, {RT_STRIDE}
s_add_u32 s39, s39, s36
buffer_load_dwordx2 v[16:17], v6, s[32:35], s39 offen
buffer_load_dwordx2 v[18:19], v6, s[32:35], s39 offen offset:256
buffer_load_dwordx2 v[20:21], v6, s[32:35], s39 offen offset:1024
buffer_load_dwordx2 v[22:23], v6, s[32:35], s39 offen offset:1280
s_cmp_eq_u32 s75, 1
s_cbranch_scc1 K2_NOV
""")
    for u in range(2):
        for q in range(2):
            a(f"s_add_u32 m0, s37, {32768 + u*2048 + q*1024}")
            a(f"s_add_u32 s41, s38, {u*RT_STRIDE + 28672}")
            a(f"buffer_load_dwordx4 v{4+q}, s[32:35], s41 offen lds")
    a("s_branch K2_GO")
    a.label("K2_NOV")
    for q in range(4):
        a(f"buffer_load_dwordx2 v[{40+2*q}:{41+2*q}], v6, s[32:35], s39 offen")
    a.label("K2_GO")
    a("""
v_lshlrev_b32 v15, 2, v14
v_sub_u32 v15, v13, v15
""")
    for r in range(16):
        kr = (r & 3) + 8 * (r >> 2)
        a(f"v_cmp_le_i32 s[{40+2*r}:{41+2*r}], {kr}, v15")
    a(f"""
v_lshrrev_b32 v8, 1, v13
v_xor_b32 v8, 14, v8
v_lshlrev_b32 v8, 4, v8
v_and_b32 v9, 1, v13
v_lshl_add_u32 v8, v9, 3, v8
v_lshl_add_u32 v8, v14, 11, v8
v_add_u32 v8, s37, v8
s_cmp_eq_u32 s75, 1
s_cselect_b32 s36, 0x3f80, 0
v_mov_b32 v10, s36
v_mov_b32 v11, 0
v_mov_b32 v12, 0x3f80
""")
    KA = 56
    VA = 60
    a("s_lshl_b32 s36, s23, 11")
    a("""
v_lshrrev_b32 v2, 1, v13
v_and_b32 v3, 1, v13
v_lshlrev_b32 v3, 3, v3
v_add_u32 v3, s36, v3
""")
    for f in range(2):
        for z in range(2):
            a(f"""
v_lshl_add_u32 v7, v14, 1, {4*f+z}
v_lshlrev_b32 v9, 1, v7
v_and_b32 v9, 15, v9
v_xor_b32 v9, v9, v2
v_lshlrev_b32 v9, 4, v9
v_lshl_add_u32 v9, v7, 8, v9
v_add_u32 v{KA+2*f+z}, v9, v3
""")
    a("""
v_and_b32 v2, 15, v1
v_lshrrev_b32 v3, 4, v1
v_and_b32 v3, 1, v3
v_and_b32 v7, 3, v2
v_lshl_add_u32 v3, v3, 2, v7
v_lshrrev_b32 v2, 2, v2
v_lshl_add_u32 v2, v14, 2, v2
""")
    for f in range(2):
        for e in range(2):
            a(f"""
v_add_u32 v7, {16*f+8*e}, v2
v_lshrrev_b32 v9, 1, v7
v_lshlrev_b32 v15, 1, v3
v_xor_b32 v9, v9, v15
v_lshlrev_b32 v9, 4, v9
v_lshl_add_u32 v9, v3, 8, v9
v_and_b32 v7, 1, v7
v_lshl_add_u32 v9, v7, 3, v9
v_add_u32 v{VA+2*f+e}, s36, v9
""")
    CP = 64
    MP = 66
    T1, T2 = 68, 69
    a(f"v_mov_b32 v{CP}, {f32bits(CEXP)}")
    a(f"v_mov_b32 v{CP+1}, {f32bits(CEXP)}")
    a("""
s_waitcnt vmcnt(4)
ds_write_b64 v8, v[10:11] offset:1792
s_mov_b32 exec_lo, 0
v_mov_b32 v22, 0xdf80
v_mov_b32 v23, 0
s_mov_b64 exec, -1
s_waitcnt lgkmcnt(0)
s_barrier
""")
    stamp(a, 1)
    QF = 16
    O = 24
    KB = 72
    S = 96
    order = [0, 8, 1, 2, 3, 4, 5, 6, 7]

    def k_read(n):
        j = order[n]
        d = KB + 8 * (n % 3)
        for f in range(2):
            for z in range(2):
                a(f"ds_read_b64 v[{d+4*f+2*z}:{d+4*f+2*z+1}], v{KA+2*f+z} offset:{j*2048}")

    def v_read(n):
        j = n
        d = KB + 8 * (n % 3)
        for f in range(2):
            for e in range(2):
                a(f"ds_read_b64_tr_b16 v[{d+4*f+2*e}:{d+4*f+2*e+1}], v{VA+2*f+e} offset:{32768 + j*2048}")

    def maxes(j, first):
        s = S + 16 * j
        i = 0
        if first:
            a(f"v_max3_f32 v{T1}, v{s}, v{s+1}, v{s+2}")
            a(f"v_max_f32 v{T1}, v{T1}, v{s+3}")
            i = 4
        while i < 16:
            a(f"v_max3_f32 v{T1}, v{T1}, v{s+i}, v{s+i+1}")
            i += 2

    k_read(0)
    k_read(1)
    for n in range(9):
        if n + 2 < 9:
            k_read(n + 2)
        rem = min(9 - n - 1, 2)
        a(f"s_waitcnt lgkmcnt({4*rem})")
        j = order[n]
        d = KB + 8 * (n % 3)
        s = S + 16 * j
        a(f"v_mfma_f32_32x32x16_bf16 v[{s}:{s+15}], v[{d}:{d+3}], v[{QF}:{QF+3}], 0")
        a(f"v_mfma_f32_32x32x16_bf16 v[{s}:{s+15}], v[{d+4}:{d+7}], v[{QF+4}:{QF+7}], v[{s}:{s+15}]")
        if n == 3:
            for r in range(16):
                a(f"v_cndmask_b32 v{S+r}, v{S+r}, v{S+128+r}, s[{40+2*r}:{41+2*r}]")
        if n == 4:
            maxes(0, True)
        if n >= 4:
            maxes(order[n - 2], False)
    a("""
s_waitcnt vmcnt(0)
v_mov_b32 v13, 0
""")
    a("ds_write_b64 v8, v[12:13] offset:34560")
    maxes(order[7], False)
    a("s_waitcnt lgkmcnt(0)")
    a("s_barrier")
    maxes(order[8], False)
    stamp(a, 2)
    a(f"""
s_cmp_eq_u32 s20, 0
s_cselect_b32 s24, s4, s6
s_cselect_b32 s25, s5, s7
s_and_b32 s25, s25, 0xffff
s_mov_b32 s26, {WOBYTES}
s_mov_b32 s27, 0x20000
s_lshr_b32 s36, s2, 3
s_lshl_b32 s36, s36, 3
s_add_u32 s36, s36, s23
s_mul_i32 s36, s36, 1664
v_and_b32 v2, 15, v1
v_lshlrev_b32 v2, 7, v2
buffer_load_dword v48, v2, s[24:27], s36 offen
""")
    v_read(0)
    v_read(1)
    a(f"v_mov_b32 v{T2}, v{T1}")
    a(f"v_permlane32_swap_b32 v{T1}, v{T2}")
    a(f"v_max_f32 v{T1}, v{T1}, v{T2}")
    a(f"v_mul_f32 v{MP}, v{CP}, v{T1}")
    a(f"v_xor_b32 v{MP}, 0x80000000, v{MP}")
    a(f"v_mov_b32 v{MP+1}, v{MP}")

    def expo(j):
        s = S + 16 * j
        for r in range(0, 16, 2):
            a(f"v_pk_fma_f32 v[{s+r}:{s+r+1}], v[{s+r}:{s+r+1}], v[{CP}:{CP+1}], v[{MP}:{MP+1}]")
        for r in range(16):
            a(f"v_exp_f32 v{s+r}, v{s+r}")

    expo(0)
    for r in range(16):
        a(f"v_cndmask_b32 v{S+128+r}, 0, v{S+r}, s[{40+2*r}:{41+2*r}]")
    for r in range(16):
        a(f"v_sub_f32 v{S+r}, v{S+r}, v{S+128+r}")
    pack(a, S, S)
    pack(a, S + 128, S + 128)
    for n in range(9):
        j = n
        s = S + 16 * j
        if n + 2 < 9:
            v_read(n + 2)
        rem = min(9 - n - 1, 2)
        a(f"s_waitcnt lgkmcnt({4*rem})")
        d = KB + 8 * (n % 3)
        cc = "0" if n == 0 else f"v[{O}:{O+15}]"
        a(f"v_mfma_f32_32x32x16_bf16 v[{O}:{O+15}], v[{d}:{d+3}], v[{s}:{s+3}], {cc}")
        a(f"v_mfma_f32_32x32x16_bf16 v[{O}:{O+15}], v[{d+4}:{d+7}], v[{s+4}:{s+7}], v[{O}:{O+15}]")
        if j + 1 <= 7:
            expo(j + 1)
            pack(a, S + 16 * (j + 1), S + 16 * (j + 1))
    stamp(a, 3)
    a(f"""
v_and_b32 v13, 31, v1
s_mul_i32 s37, s22, 7
v_add_u32 v2, s37, v14
v_lshlrev_b32 v3, 4, v13
s_lshl_b32 s36, s20, 6
s_lshl_b32 s37, s21, 3
s_add_u32 s36, s36, s37
s_add_u32 s36, s36, s23
s_mul_i32 s36, s36, {O_RT}
s_add_u32 s36, s36, {O_OFF}
v_lshrrev_b32 v4, 1, v2
v_and_b32 v5, 1, v2
v_lshl_add_u32 v4, v4, 9, v3
v_lshl_add_u32 v4, v5, 3, v4
""")
    a(f"v_mov_b32 v{T1}, v{O+12}")
    a(f"v_mov_b32 v{T2}, v{O+12}")
    a(f"v_permlane32_swap_b32 v{T1}, v{T2}")
    a(f"v_rcp_f32 v{T2}, v{T2}")
    for r in range(16):
        a(f"v_mul_f32 v{O+r}, v{O+r}, v{T2}")
    pack(a, O, O)
    for rg in range(4):
        if rg == 3:
            a("s_mov_b32 exec_hi, 0")
        a(f"buffer_store_dwordx2 v[{O+2*rg}:{O+2*rg+1}], v4, s[32:35], s36 offen offset:{rg*512}")
    a("s_mov_b64 exec, -1")
    stamp_out(a, 5, 1)
    a.label("K2_END")
    a("s_endpgm")
    return a.finish()


K3_LDS = 448 * 128


def k3():
    a = Asm()
    a(f"""
.globl k3_kernel
.p2align 8
.type k3_kernel,@function
k3_kernel:
s_cmp_ge_u32 s2, 224
s_cbranch_scc1 K3_END
""")
    stamp(a, 0)
    a(f"""
s_load_dwordx2 s[4:5], s[0:1], 16
s_load_dwordx2 s[6:7], s[0:1], 40
s_load_dwordx2 s[8:9], s[0:1], 48
s_load_dwordx2 s[10:11], s[0:1], 64
s_and_b32 s36, s2, 7
s_lshr_b32 s37, s2, 3
s_and_b32 s20, s36, 1
s_lshr_b32 s38, s36, 1
s_lshl_b32 s38, s38, 2
s_and_b32 s39, s37, 3
s_add_u32 s21, s38, s39
s_lshr_b32 s22, s37, 2
v_lshrrev_b32 v2, 6, v0
v_and_b32 v1, 63, v0
v_lshrrev_b32 v8, 3, v1
v_readfirstlane_b32 s23, v2
v_and_b32 v9, 7, v1
v_lshrrev_b32 v10, 4, v1
v_and_b32 v10, 1, v10
v_lshlrev_b32 v10, 2, v10
v_xor_b32 v9, v9, v10
v_mul_u32_u24 v8, 896, v8
v_lshlrev_b32 v9, 4, v9
v_add_u32 v2, v8, v9
v_lshlrev_b32 v3, 4, v1
s_waitcnt lgkmcnt(0)
s_cmp_eq_u32 s20, 0
s_cselect_b32 s24, s4, s6
s_cselect_b32 s25, s5, s7
s_and_b32 s25, s25, 0xffff
s_mov_b32 s26, {WOBYTES}
s_mov_b32 s27, 0x20000
s_mov_b32 s28, s8
s_and_b32 s29, s9, 0xffff
s_mov_b32 s30, {OUTBYTES}
s_mov_b32 s31, 0x20000
s_mov_b32 s32, s10
s_and_b32 s33, s11, 0xffff
s_mov_b32 s34, {WS_BYTES}
s_mov_b32 s35, 0x20000
s_mul_i32 s36, s23, 14336
s_lshl_b32 s37, s22, 7
s_add_u32 s36, s36, s37
s_lshl_b32 s37, s23, 11
s_lshl_b32 s39, s20, 6
s_lshl_b32 s38, s21, 2
s_add_u32 s39, s39, s38
s_add_u32 s39, s39, s23
s_mul_i32 s39, s39, {O_RT}
s_add_u32 s39, s39, {O_OFF}
""")
    BF = 64
    for blk in range(7):
        for q in range(2):
            a(f"s_add_u32 s38, s36, {(blk*64 + 8*q)*896}")
            a(f"s_add_u32 m0, s37, {(blk*64 + 8*q)*128}")
            a("buffer_load_dwordx4 v2, s[24:27], s38 offen lds")
        for k in range(4):
            st = blk * 4 + k
            d = BF + 4 * st
            a(f"buffer_load_dwordx4 v[{d}:{d+3}], v3, s[32:35], s39 offen offset:{k*1024}")
        a("s_add_u32 s39, s39, 4096")
        if blk < 2:
            a("s_barrier")
    a("""
v_lshrrev_b32 v10, 5, v1
v_lshlrev_b32 v10, 3, v10
v_and_b32 v11, 15, v1
v_lshrrev_b32 v12, 2, v11
v_add_u32 v10, v10, v12
v_lshlrev_b32 v10, 7, v10
v_lshrrev_b32 v12, 3, v11
v_lshlrev_b32 v12, 2, v12
v_lshrrev_b32 v13, 4, v1
v_and_b32 v13, 1, v13
v_lshlrev_b32 v13, 1, v13
v_add_u32 v12, v12, v13
v_and_b32 v13, 3, v11
v_lshrrev_b32 v14, 1, v13
v_add_u32 v12, v12, v14
v_lshlrev_b32 v12, 4, v12
v_and_b32 v13, 1, v13
v_lshlrev_b32 v13, 3, v13
v_add3_u32 v8, v10, v12, v13
v_xor_b32 v9, 64, v8
""")
    ACC = (16, 32)
    AF = (48, 56)

    def a_reads(st):
        for nt2 in range(2):
            d = AF[st & 1] + 4 * nt2
            for e in range(2):
                a(f"ds_read_b64_tr_b16 v[{d+2*e}:{d+2*e+1}], v{8+nt2} offset:{(16*st + 4*e)*128}")

    for st in range(28):
        blk, k = st >> 2, st & 3
        if k == 0:
            a(f"s_waitcnt vmcnt({6*(6-blk)})")
            a("s_barrier")
            if blk == 0:
                stamp(a, 1)
            a_reads(st)
        n = 0
        if k < 3:
            a_reads(st + 1)
            n = 4
        a(f"s_waitcnt lgkmcnt({n})")
        for nt2 in range(2):
            acc = ACC[nt2]
            cc = "0" if st == 0 else f"v[{acc}:{acc+15}]"
            d = AF[st & 1] + 4 * nt2
            bfr = BF + 4 * st
            a(f"v_mfma_f32_32x32x16_bf16 v[{acc}:{acc+15}], v[{d}:{d+3}], v[{bfr}:{bfr+3}], {cc}")
    stamp(a, 2)
    a("""
v_and_b32 v10, 31, v1
v_lshrrev_b32 v11, 5, v1
v_mul_u32_u24 v10, 1792, v10
v_lshlrev_b32 v11, 4, v11
v_add_u32 v10, v10, v11
s_lshl_b32 s36, s21, 7
s_lshl_b32 s37, s23, 5
s_add_u32 s36, s36, s37
s_mul_i32 s36, s36, 1792
s_mul_i32 s37, s20, 896
s_add_u32 s36, s36, s37
s_lshl_b32 s37, s22, 7
s_add_u32 s36, s36, s37
""")
    for nt2 in range(2):
        acc = ACC[nt2]
        pack(a, acc, acc)
        for p in range(2):
            b = acc + 4 * p
            a(f"v_permlane32_swap_b32 v{b}, v{b+2}")
            a(f"v_permlane32_swap_b32 v{b+1}, v{b+3}")
            a(f"buffer_store_dwordx4 v[{b}:{b+3}], v10, s[28:31], s36 offen offset:{nt2*64 + p*32}")
    stamp_out(a, 4, 2)
    a.label("K3_END")
    a("s_endpgm")
    return a.finish()


def desc(name, vgpr, sgpr):
    acc = (vgpr + 3) // 4 * 4
    return f""".amdhsa_kernel {name}
  .amdhsa_next_free_vgpr {vgpr}
  .amdhsa_next_free_sgpr {sgpr}
  .amdhsa_accum_offset {acc}
  .amdhsa_group_segment_fixed_size 0
  .amdhsa_kernarg_size 72
  .amdhsa_user_sgpr_count 2
  .amdhsa_user_sgpr_kernarg_segment_ptr 1
  .amdhsa_system_sgpr_workgroup_id_x 1
.end_amdhsa_kernel
"""


def main():
    out = HEADER
    out += f"; @launch kernel=k1_kernel grid=(224,1,1) block=(512,1,1) lds={K1_LDS}\n"
    out += f"; @launch kernel=k2_kernel grid=(256,1,1) block=(512,1,1) lds={K2_LDS}\n"
    out += f"; @launch kernel=k3_kernel grid=(224,1,1) block=(256,1,1) lds={K3_LDS}\n"
    out += '.amdgcn_target "amdgcn-amd-amdhsa--gfx950"\n.text\n'
    out += k1()
    out += k2()
    out += k3()
    out += '.section .rodata,"a"\n.p2align 6\n'
    out += desc("k1_kernel", 192, 102)
    out += ".p2align 6\n"
    out += desc("k2_kernel", 240, 102)
    out += ".p2align 6\n"
    out += desc("k3_kernel", 176, 102)
    args = [x for x in sys.argv[1:] if not x.startswith("--")]
    path = args[0] if args else f"cdna_kernels/{NAME}.s"
    open(path, "w").write(out)


main()
```

```python
import sys, struct, math
sys.path.insert(0, "dev")
from asmlib import Asm

NAME = "concat_heads__sliding_block__sliding_block__prompt"
HEADER = open(f"cdna_kernels/{NAME}.s.ref").read().split("; Override launch geometry")[0]
STAMPS = "--stamp" in sys.argv
RR = [int(x[4:]) for x in sys.argv if x.startswith("--r=")]
RR = RR[0] if RR else 3
if RR == 1:
    ROT = "s_mov_b32 s74, 0"
elif RR == 2:
    ROT = "s_add_u32 s39, s39, s22\ns_and_b32 s39, s39, 1\ns_mul_i32 s74, s39, 3"
elif RR == 3:
    ROT = "s_add_u32 s39, s39, s22\ns_mul_i32 s38, s39, 86\ns_lshr_b32 s38, s38, 8\ns_mul_i32 s38, s38, 3\ns_sub_u32 s39, s39, s38\ns_lshl_b32 s74, s39, 1"
elif RR == 4:
    ROT = "s_add_u32 s39, s39, s22\ns_and_b32 s39, s39, 3\ns_mul_i32 s74, s39, 7\ns_lshr_b32 s74, s74, 2"
else:
    ROT = "s_lshl_b32 s39, s39, 1\ns_add_u32 s39, s39, s22\ns_cmp_ge_u32 s39, 7\ns_cselect_b32 s38, 7, 0\ns_sub_u32 s74, s39, s38"


KN = "fused_kernel"


def ldsu(n):
    return (n + 1279) // 1280 * 5


def f32bits(x):
    return struct.unpack("<I", struct.pack("<f", x))[0]


XBYTES = 2048 * 896
WBYTES = 448 * 2688
WOBYTES = 448 * 896
OUTBYTES = 2048 * 1792
RT_STRIDE = 336 * 256
QKV_BYTES = 2 * 64 * RT_STRIDE
O_OFF = QKV_BYTES + 4096
O_RT = 56 * 512
WS_BYTES = O_OFF + 2 * 64 * O_RT
STAMP_OFF = 32 << 20
CEXP = (28 ** -0.5) * math.log2(math.e)


def stamp(a, i):
    if STAMPS:
        a("s_waitcnt lgkmcnt(0)")
        a(f"s_memtime s[{80+2*i}:{81+2*i}]")
        a("s_waitcnt lgkmcnt(0)")


def stamp_out(a, n, kidx, last=None):
    if STAMPS:
        a("s_waitcnt vmcnt(0)")
        stamp(a, n - 1 if last is None else last)
        a("s_mov_b32 s34, 0x4000000")
        a("s_lshl_b32 s36, s2, 3")
        a("s_add_u32 s36, s36, s23")
        a("s_lshl_b32 s36, s36, 6")
        a(f"s_add_u32 s36, s36, {STAMP_OFF + kidx * (1 << 20)}")
        a("v_mov_b32 v3, 0")
        a("s_mov_b64 exec, 1")
        for i in range(n):
            a(f"v_mov_b32 v4, s{80+2*i}")
            a(f"buffer_store_dword v4, v3, s[32:35], s36 offen offset:{4*i}")
            a("s_nop 1")


def pack(a, src, dst):
    for i in range(8):
        a(f"v_cvt_pk_bf16_f32 v{dst+i}, v{src+2*i}, v{src+2*i+1}")


K1_STAGE = 40960
K1_LDS = 4 * K1_STAGE
K1_WOFF = 16384


def k1():
    a = Asm()
    a(f"""
.globl {KN}
.p2align 8
.type {KN},@function
{KN}:
s_getreg_b32 s3, hwreg(HW_REG_LDS_ALLOC, 12, 10)
s_cmp_eq_u32 s3, {K2_LDSU}
s_cbranch_scc1 PH2
s_cmp_eq_u32 s3, {K3_LDSU}
s_cbranch_scc1 PH3
s_cmp_ge_u32 s2, 224
s_cbranch_scc1 K1_END
""")
    stamp(a, 0)
    a(f"""
s_load_dwordx8 s[4:11], s[0:1], 0
s_load_dwordx4 s[12:15], s[0:1], 32
s_load_dwordx2 s[16:17], s[0:1], 64
s_and_b32 s36, s2, 7
s_lshr_b32 s37, s2, 3
s_and_b32 s20, s36, 1
s_lshr_b32 s38, s36, 1
s_lshl_b32 s38, s38, 2
s_and_b32 s39, s37, 3
s_add_u32 s21, s38, s39
s_lshr_b32 s22, s37, 2
{ROT}
v_lshrrev_b32 v2, 6, v0
v_and_b32 v1, 63, v0
s_nop 0
v_readfirstlane_b32 s23, v2
s_cmp_lt_u32 s23, 4
s_cbranch_scc1 K1_COMPUTE
s_sub_u32 s76, s23, 4
""")
    for ip, vd in enumerate(("v2", "v3", "v4")):
        a(f"""
v_add_u32 v8, {64*ip}, v1
v_mul_u32_u24 v9, 2731, v8
v_lshrrev_b32 v9, 16, v9
v_mul_u32_u24 v10, 24, v9
v_sub_u32 v10, v8, v10
v_lshrrev_b32 v11, 1, v9
v_and_b32 v11, 1, v11
v_lshlrev_b32 v11, 2, v11
v_xor_b32 v10, v10, v11
v_mul_u32_u24 v9, 2688, v9
v_lshlrev_b32 v10, 4, v10
v_add_u32 {vd}, v9, v10
""")
    a("""
v_lshrrev_b32 v8, 3, v1
v_and_b32 v9, 7, v1
v_lshrrev_b32 v10, 4, v1
v_xor_b32 v11, v9, v10
v_mul_u32_u24 v8, 896, v8
v_lshlrev_b32 v12, 4, v11
v_add_u32 v5, v8, v12
v_xor_b32 v11, 4, v11
v_lshlrev_b32 v12, 4, v11
v_add_u32 v6, v8, v12
s_lshl_b32 s36, s21, 7
s_lshl_b32 s37, s76, 5
s_add_u32 s36, s36, s37
s_mul_i32 s70, s36, 896
s_mul_i32 s36, s76, 43008
s_mul_i32 s37, s22, 384
s_add_u32 s71, s36, s37
s_lshl_b32 s72, s76, 12
s_mul_i32 s73, s76, 6144
s_waitcnt lgkmcnt(0)
""")
    a(f"""
s_add_u32 s73, s73, {K1_WOFF}
s_cmp_eq_u32 s20, 0
s_cselect_b32 s24, s4, s10
s_cselect_b32 s25, s5, s11
s_cselect_b32 s28, s6, s12
s_cselect_b32 s29, s7, s13
s_and_b32 s25, s25, 0xffff
s_and_b32 s29, s29, 0xffff
s_mov_b32 s26, {XBYTES}
s_mov_b32 s27, 0x20000
s_mov_b32 s30, {WBYTES}
s_mov_b32 s31, 0x20000
""")

    def dma(i):
        st = (i % 4) * K1_STAGE
        a("s_lshl_b32 s36, s74, 7\ns_add_u32 s36, s36, s70\ns_mul_i32 s37, s74, 172032\ns_add_u32 s37, s37, s71\n"
          "s_add_u32 s74, s74, 1\ns_cmp_eq_u32 s74, 7\ns_cselect_b32 s74, 0, s74")
        for q in range(6):
            a(f"s_add_u32 s38, s37, {(q//3)*8*2688}\ns_add_u32 m0, s73, {st + q*1024}\n"
              f"buffer_load_dwordx4 v{2+q%3}, s[28:31], s38 offen lds")
        for q in range(4):
            a(f"s_add_u32 s38, s36, {q*7168}\ns_add_u32 m0, s72, {st + q*1024}\n"
              f"buffer_load_dwordx4 v{5+(q&1)}, s[24:27], s38 offen lds")

    dma(0)
    dma(1)
    for i in range(7):
        a(f"s_waitcnt vmcnt({10 if i < 6 else 0})")
        a("s_barrier")
        if i + 2 <= 6:
            dma(i + 2)
    a("s_endpgm")
    a.label("K1_COMPUTE")
    a(f"""
s_and_b32 s36, s23, 1
s_lshl_b32 s36, s36, 13
v_and_b32 v12, 31, v1
v_lshrrev_b32 v13, 5, v1
v_lshrrev_b32 v14, 1, v12
v_and_b32 v14, 7, v14
v_xor_b32 v14, v14, v13
v_lshlrev_b32 v14, 4, v14
v_lshlrev_b32 v15, 7, v12
v_add3_u32 v7, v15, v14, s36
v_xor_b32 v8, 32, v7
v_xor_b32 v9, 64, v7
v_xor_b32 v10, 96, v7
""")
    a(f"""
s_lshr_b32 s36, s23, 1
s_mul_i32 s36, s36, 3
v_lshrrev_b32 v13, 5, v1
v_lshlrev_b32 v13, 3, v13
v_and_b32 v14, 15, v1
v_lshrrev_b32 v15, 2, v14
v_add_u32 v13, v13, v15
v_mul_u32_u24 v13, 384, v13
v_lshrrev_b32 v15, 4, v1
v_and_b32 v15, 1, v15
v_lshlrev_b32 v15, 5, v15
v_and_b32 v12, 3, v14
v_lshlrev_b32 v12, 3, v12
v_add3_u32 v13, v13, v15, v12
v_add_u32 v13, {K1_WOFF}, v13
v_lshrrev_b32 v14, 3, v14
""")
    WA, XA = 160, 172
    for m in range(3):
        a(f"""
s_add_u32 s37, s36, {m}
v_xor_b32 v12, s37, v14
v_lshlrev_b32 v12, 6, v12
v_add_u32 v11, v13, v12
""")
        for s4 in range(4):
            a(f"v_add_u32 v{WA+3*s4+m}, {s4*K1_STAGE}, v11")
    for s4 in range(4):
        for ks in range(4):
            a(f"v_add_u32 v{XA+4*s4+ks}, {s4*K1_STAGE}, v{7+ks}")
    a(f"""
s_waitcnt lgkmcnt(0)
s_mov_b32 s32, s16
s_and_b32 s33, s17, 0xffff
s_mov_b32 s34, {WS_BYTES}
s_mov_b32 s35, 0x20000
v_lshlrev_b32 v2, 3, v1
s_lshl_b32 s36, s20, 6
s_lshl_b32 s37, s21, 2
s_add_u32 s36, s36, s37
s_and_b32 s37, s23, 1
s_lshl_b32 s37, s37, 1
s_add_u32 s36, s36, s37
s_mul_i32 s36, s36, {RT_STRIDE}
s_lshr_b32 s37, s23, 1
s_mul_i32 s37, s37, 3
s_mul_i32 s38, s22, 6
s_add_u32 s37, s37, s38
s_lshl_b32 s37, s37, 11
s_add_u32 s36, s36, s37
""")
    ACC = 16
    XF = (112, 120)
    WF = (128, 140)

    def read_list(step):
        i, ks = step >> 2, step & 3
        s4 = i % 4
        L = []
        d = XF[step & 1]
        L.append(f"ds_read_b128 v[{d}:{d+3}], v{XA+4*s4+ks}")
        for m in range(3):
            dw = WF[step & 1] + 4 * m
            L.append(f"ds_read_b64_tr_b16 v[{dw}:{dw+1}], v{WA+3*s4+m} offset:{(16*ks)*384}")
            L.append(f"ds_read_b64_tr_b16 v[{dw+2}:{dw+3}], v{WA+3*s4+m} offset:{(16*ks+4)*384}")
        L.append(f"ds_read_b128 v[{d+4}:{d+7}], v{XA+4*s4+ks} offset:4096")
        return L

    a("s_barrier")
    stamp(a, 1)
    for r in read_list(0):
        a(r)
    for step in range(28):
        i, ks = step >> 2, step & 3
        fill = []
        if ks == 2 and i + 1 <= 6:
            a("s_barrier")
        if step + 1 < 28:
            fill = read_list(step + 1)
        a("s_waitcnt lgkmcnt(0)")
        order = [(0, 0), (0, 1), (0, 2), (1, 0), (1, 1), (1, 2)]
        for n, (aa, m) in enumerate(order):
            acc = ACC + (aa * 3 + m) * 16
            cc = "0" if step == 0 else f"v[{acc}:{acc+15}]"
            wf = WF[step & 1] + 4 * m
            xf = XF[step & 1] + 4 * aa
            a(f"v_mfma_f32_32x32x16_bf16 v[{acc}:{acc+15}], v[{wf}:{wf+3}], v[{xf}:{xf+3}], {cc}")
            for _ in range(2):
                if fill:
                    a(fill.pop(0))
        for x in fill:
            a(x)
    stamp(a, 2)
    for aa in range(2):
        if aa:
            a(f"s_add_u32 s36, s36, {RT_STRIDE}")
        for m in range(3):
            acc = ACC + (aa * 3 + m) * 16
            pack(a, acc, acc)
            a(f"s_add_u32 s37, s36, {m*2048}")
            for rg in range(4):
                a(f"buffer_store_dwordx2 v[{acc+2*rg}:{acc+2*rg+1}], v2, s[32:35], s37 offen offset:{rg*512}")
    stamp_out(a, 4, 0)
    a.label("K1_END")
    a("s_endpgm")
    return a.finish()


K2_LDS = 65536
K2_LDSU = ldsu(65536)
K3_LDSU = ldsu(448 * 128)


def k2():
    a = Asm()
    a(f"""
.p2align 6
PH2:
s_cmp_ge_u32 s2, 256
s_cbranch_scc1 K2_END
""")
    stamp(a, 0)
    a(f"""
s_load_dwordx2 s[16:17], s[0:1], 64
s_load_dwordx2 s[4:5], s[0:1], 16
s_load_dwordx2 s[6:7], s[0:1], 40
s_and_b32 s36, s2, 7
s_lshr_b32 s37, s2, 3
s_and_b32 s20, s36, 1
s_and_b32 s38, s36, 6
s_and_b32 s39, s37, 1
s_add_u32 s21, s38, s39
s_lshr_b32 s22, s37, 1
v_lshrrev_b32 v2, 6, v0
v_and_b32 v1, 63, v0
v_and_b32 v13, 31, v1
v_readfirstlane_b32 s23, v2
v_lshrrev_b32 v14, 5, v1
v_lshrrev_b32 v8, 4, v1
v_and_b32 v9, 15, v1
v_lshlrev_b32 v10, 1, v8
v_xor_b32 v10, v9, v10
v_lshlrev_b32 v10, 4, v10
v_lshl_add_u32 v4, v8, 8, v10
v_xor_b32 v5, 0x80, v4
v_add_u32 v5, 0x400, v5
v_lshlrev_b32 v6, 3, v13
v_lshl_add_u32 v6, v14, 9, v6
s_waitcnt lgkmcnt(0)
s_mov_b32 s32, s16
s_and_b32 s33, s17, 0xffff
s_mov_b32 s34, {WS_BYTES}
s_mov_b32 s35, 0x20000
; s36 = ((b*64 + 8t)*336 + 7h)*256
s_lshl_b32 s36, s20, 6
s_lshl_b32 s37, s21, 3
s_add_u32 s36, s36, s37
s_mul_i32 s36, s36, {RT_STRIDE}
s_mul_i32 s37, s22, 1792
s_add_u32 s36, s36, s37
s_mul_i32 s37, s23, {2*RT_STRIDE}
s_add_u32 s38, s36, s37
s_sub_u32 s38, s38, {8*RT_STRIDE - 28672}
s_lshl_b32 s37, s23, 12
s_cmp_eq_u32 s21, 0
s_cselect_b32 s40, 1, 0
s_cmp_lt_u32 s23, 4
s_cselect_b32 s41, 1, 0
s_and_b32 s75, s40, s41
s_cmp_eq_u32 s75, 1
s_cbranch_scc1 K2_FILL
""")
    for u in range(2):
        for q in range(2):
            a(f"s_add_u32 m0, s37, {u*2048 + q*1024}")
            a(f"s_add_u32 s41, s38, {u*RT_STRIDE}")
            a(f"buffer_load_dwordx4 v{4+q}, s[32:35], s41 offen lds")
    a("s_branch K2_Q")
    a.label("K2_FILL")
    a("""
v_mov_b32 v8, 0
v_mov_b32 v9, 0
v_mov_b32 v10, 0
v_mov_b32 v11, 0
v_lshlrev_b32 v12, 4, v1
v_add_u32 v12, s37, v12
""")
    for q in range(4):
        a(f"ds_write_b128 v12, v[8:11] offset:{q*1024}")
        a(f"ds_write_b128 v12, v[8:11] offset:{32768 + q*1024}")
    a("s_waitcnt lgkmcnt(0)")
    a.label("K2_Q")
    a(f"""
s_mul_i32 s39, s23, {RT_STRIDE}
s_add_u32 s39, s39, s36
buffer_load_dwordx2 v[16:17], v6, s[32:35], s39 offen
buffer_load_dwordx2 v[18:19], v6, s[32:35], s39 offen offset:256
buffer_load_dwordx2 v[20:21], v6, s[32:35], s39 offen offset:1024
buffer_load_dwordx2 v[22:23], v6, s[32:35], s39 offen offset:1280
s_cmp_eq_u32 s75, 1
s_cbranch_scc1 K2_NOV
""")
    for u in range(2):
        for q in range(2):
            a(f"s_add_u32 m0, s37, {32768 + u*2048 + q*1024}")
            a(f"s_add_u32 s41, s38, {u*RT_STRIDE + 28672}")
            a(f"buffer_load_dwordx4 v{4+q}, s[32:35], s41 offen lds")
    a("s_branch K2_GO")
    a.label("K2_NOV")
    for q in range(4):
        a(f"buffer_load_dwordx2 v[{40+2*q}:{41+2*q}], v6, s[32:35], s39 offen")
    a.label("K2_GO")
    a("""
v_lshlrev_b32 v15, 2, v14
v_sub_u32 v15, v13, v15
""")
    for r in range(16):
        kr = (r & 3) + 8 * (r >> 2)
        a(f"v_cmp_le_i32 s[{40+2*r}:{41+2*r}], {kr}, v15")
    a(f"""
v_lshrrev_b32 v8, 1, v13
v_xor_b32 v8, 14, v8
v_lshlrev_b32 v8, 4, v8
v_and_b32 v9, 1, v13
v_lshl_add_u32 v8, v9, 3, v8
v_lshl_add_u32 v8, v14, 11, v8
v_add_u32 v8, s37, v8
s_cmp_eq_u32 s75, 1
s_cselect_b32 s36, 0x3f80, 0
v_mov_b32 v10, s36
v_mov_b32 v11, 0
v_mov_b32 v12, 0x3f80
""")
    KA = 56
    VA = 60
    a("s_lshl_b32 s36, s23, 11")
    a("""
v_lshrrev_b32 v2, 1, v13
v_and_b32 v3, 1, v13
v_lshlrev_b32 v3, 3, v3
v_add_u32 v3, s36, v3
""")
    for f in range(2):
        for z in range(2):
            a(f"""
v_lshl_add_u32 v7, v14, 1, {4*f+z}
v_lshlrev_b32 v9, 1, v7
v_and_b32 v9, 15, v9
v_xor_b32 v9, v9, v2
v_lshlrev_b32 v9, 4, v9
v_lshl_add_u32 v9, v7, 8, v9
v_add_u32 v{KA+2*f+z}, v9, v3
""")
    a("""
v_and_b32 v2, 15, v1
v_lshrrev_b32 v3, 4, v1
v_and_b32 v3, 1, v3
v_and_b32 v7, 3, v2
v_lshl_add_u32 v3, v3, 2, v7
v_lshrrev_b32 v2, 2, v2
v_lshl_add_u32 v2, v14, 2, v2
""")
    for f in range(2):
        for e in range(2):
            a(f"""
v_add_u32 v7, {16*f+8*e}, v2
v_lshrrev_b32 v9, 1, v7
v_lshlrev_b32 v15, 1, v3
v_xor_b32 v9, v9, v15
v_lshlrev_b32 v9, 4, v9
v_lshl_add_u32 v9, v3, 8, v9
v_and_b32 v7, 1, v7
v_lshl_add_u32 v9, v7, 3, v9
v_add_u32 v{VA+2*f+e}, s36, v9
""")
    CP = 64
    MP = 66
    T1, T2 = 68, 69
    a(f"v_mov_b32 v{CP}, {f32bits(CEXP)}")
    a(f"v_mov_b32 v{CP+1}, {f32bits(CEXP)}")
    a("""
s_waitcnt vmcnt(4)
ds_write_b64 v8, v[10:11] offset:1792
s_mov_b32 exec_lo, 0
v_mov_b32 v22, 0xdf80
v_mov_b32 v23, 0
s_mov_b64 exec, -1
s_waitcnt lgkmcnt(0)
s_barrier
""")
    stamp(a, 1)
    QF = 16
    O = 24
    KB = 72
    S = 96
    order = [0, 8, 1, 2, 3, 4, 5, 6, 7]

    def k_read(n):
        j = order[n]
        d = KB + 8 * (n % 3)
        for f in range(2):
            for z in range(2):
                a(f"ds_read_b64 v[{d+4*f+2*z}:{d+4*f+2*z+1}], v{KA+2*f+z} offset:{j*2048}")

    def v_read(n):
        j = n
        d = KB + 8 * (n % 3)
        for f in range(2):
            for e in range(2):
                a(f"ds_read_b64_tr_b16 v[{d+4*f+2*e}:{d+4*f+2*e+1}], v{VA+2*f+e} offset:{32768 + j*2048}")

    def maxes(j, first):
        s = S + 16 * j
        i = 0
        if first:
            a(f"v_max3_f32 v{T1}, v{s}, v{s+1}, v{s+2}")
            a(f"v_max_f32 v{T1}, v{T1}, v{s+3}")
            i = 4
        while i < 16:
            a(f"v_max3_f32 v{T1}, v{T1}, v{s+i}, v{s+i+1}")
            i += 2

    k_read(0)
    k_read(1)
    for n in range(9):
        if n + 2 < 9:
            k_read(n + 2)
        rem = min(9 - n - 1, 2)
        a(f"s_waitcnt lgkmcnt({4*rem})")
        j = order[n]
        d = KB + 8 * (n % 3)
        s = S + 16 * j
        a(f"v_mfma_f32_32x32x16_bf16 v[{s}:{s+15}], v[{d}:{d+3}], v[{QF}:{QF+3}], 0")
        a(f"v_mfma_f32_32x32x16_bf16 v[{s}:{s+15}], v[{d+4}:{d+7}], v[{QF+4}:{QF+7}], v[{s}:{s+15}]")
        if n == 3:
            for r in range(16):
                a(f"v_cndmask_b32 v{S+r}, v{S+r}, v{S+128+r}, s[{40+2*r}:{41+2*r}]")
        if n == 4:
            maxes(0, True)
        if n >= 4:
            maxes(order[n - 2], False)
    a("""
s_waitcnt vmcnt(0)
v_mov_b32 v13, 0
""")
    a("ds_write_b64 v8, v[12:13] offset:34560")
    maxes(order[7], False)
    a("s_waitcnt lgkmcnt(0)")
    a("s_barrier")
    maxes(order[8], False)
    stamp(a, 2)
    a(f"""
s_cmp_eq_u32 s20, 0
s_cselect_b32 s24, s4, s6
s_cselect_b32 s25, s5, s7
s_and_b32 s25, s25, 0xffff
s_mov_b32 s26, {WOBYTES}
s_mov_b32 s27, 0x20000
s_lshr_b32 s36, s2, 3
s_lshl_b32 s36, s36, 3
s_add_u32 s36, s36, s23
s_mul_i32 s36, s36, 1664
v_and_b32 v2, 15, v1
v_lshlrev_b32 v2, 7, v2
buffer_load_dword v48, v2, s[24:27], s36 offen
""")
    v_read(0)
    v_read(1)
    a(f"v_mov_b32 v{T2}, v{T1}")
    a(f"v_permlane32_swap_b32 v{T1}, v{T2}")
    a(f"v_max_f32 v{T1}, v{T1}, v{T2}")
    a(f"v_mul_f32 v{MP}, v{CP}, v{T1}")
    a(f"v_xor_b32 v{MP}, 0x80000000, v{MP}")
    a(f"v_mov_b32 v{MP+1}, v{MP}")

    def expo(j):
        s = S + 16 * j
        for r in range(0, 16, 2):
            a(f"v_pk_fma_f32 v[{s+r}:{s+r+1}], v[{s+r}:{s+r+1}], v[{CP}:{CP+1}], v[{MP}:{MP+1}]")
        for r in range(16):
            a(f"v_exp_f32 v{s+r}, v{s+r}")

    expo(0)
    for r in range(16):
        a(f"v_cndmask_b32 v{S+128+r}, 0, v{S+r}, s[{40+2*r}:{41+2*r}]")
    for r in range(16):
        a(f"v_sub_f32 v{S+r}, v{S+r}, v{S+128+r}")
    pack(a, S, S)
    pack(a, S + 128, S + 128)
    for n in range(9):
        j = n
        s = S + 16 * j
        if n + 2 < 9:
            v_read(n + 2)
        rem = min(9 - n - 1, 2)
        a(f"s_waitcnt lgkmcnt({4*rem})")
        d = KB + 8 * (n % 3)
        cc = "0" if n == 0 else f"v[{O}:{O+15}]"
        a(f"v_mfma_f32_32x32x16_bf16 v[{O}:{O+15}], v[{d}:{d+3}], v[{s}:{s+3}], {cc}")
        a(f"v_mfma_f32_32x32x16_bf16 v[{O}:{O+15}], v[{d+4}:{d+7}], v[{s+4}:{s+7}], v[{O}:{O+15}]")
        if j + 1 <= 7:
            expo(j + 1)
            pack(a, S + 16 * (j + 1), S + 16 * (j + 1))
    stamp(a, 3)
    a(f"""
v_and_b32 v13, 31, v1
s_mul_i32 s37, s22, 7
v_add_u32 v2, s37, v14
v_lshlrev_b32 v3, 4, v13
s_lshl_b32 s36, s20, 6
s_lshl_b32 s37, s21, 3
s_add_u32 s36, s36, s37
s_add_u32 s36, s36, s23
s_mul_i32 s36, s36, {O_RT}
s_add_u32 s36, s36, {O_OFF}
v_lshrrev_b32 v4, 1, v2
v_and_b32 v5, 1, v2
v_lshl_add_u32 v4, v4, 9, v3
v_lshl_add_u32 v4, v5, 3, v4
""")
    a(f"v_mov_b32 v{T1}, v{O+12}")
    a(f"v_mov_b32 v{T2}, v{O+12}")
    a(f"v_permlane32_swap_b32 v{T1}, v{T2}")
    a(f"v_rcp_f32 v{T2}, v{T2}")
    for r in range(16):
        a(f"v_mul_f32 v{O+r}, v{O+r}, v{T2}")
    pack(a, O, O)
    for rg in range(4):
        if rg == 3:
            a("s_mov_b32 exec_hi, 0")
        a(f"buffer_store_dwordx2 v[{O+2*rg}:{O+2*rg+1}], v4, s[32:35], s36 offen offset:{rg*512}")
    a("s_mov_b64 exec, -1")
    stamp_out(a, 5, 1)
    a.label("K2_END")
    a("s_endpgm")
    return a.finish()


K3_LDS = 448 * 128


def k3():
    a = Asm()
    a(f"""
.p2align 6
PH3:
s_cmp_ge_u32 s2, 224
s_cbranch_scc1 K3_END
""")
    stamp(a, 0)
    a(f"""
s_load_dwordx2 s[4:5], s[0:1], 16
s_load_dwordx2 s[6:7], s[0:1], 40
s_load_dwordx2 s[8:9], s[0:1], 48
s_load_dwordx2 s[10:11], s[0:1], 64
s_and_b32 s36, s2, 7
s_lshr_b32 s37, s2, 3
s_and_b32 s20, s36, 1
s_lshr_b32 s38, s36, 1
s_lshl_b32 s38, s38, 2
s_and_b32 s39, s37, 3
s_add_u32 s21, s38, s39
s_lshr_b32 s22, s37, 2
v_lshrrev_b32 v2, 6, v0
v_and_b32 v1, 63, v0
v_lshrrev_b32 v8, 3, v1
v_readfirstlane_b32 s23, v2
v_and_b32 v9, 7, v1
v_lshrrev_b32 v10, 4, v1
v_and_b32 v10, 1, v10
v_lshlrev_b32 v10, 2, v10
v_xor_b32 v9, v9, v10
v_mul_u32_u24 v8, 896, v8
v_lshlrev_b32 v9, 4, v9
v_add_u32 v2, v8, v9
v_lshlrev_b32 v3, 4, v1
s_waitcnt lgkmcnt(0)
s_cmp_eq_u32 s20, 0
s_cselect_b32 s24, s4, s6
s_cselect_b32 s25, s5, s7
s_and_b32 s25, s25, 0xffff
s_mov_b32 s26, {WOBYTES}
s_mov_b32 s27, 0x20000
s_mov_b32 s28, s8
s_and_b32 s29, s9, 0xffff
s_mov_b32 s30, {OUTBYTES}
s_mov_b32 s31, 0x20000
s_mov_b32 s32, s10
s_and_b32 s33, s11, 0xffff
s_mov_b32 s34, {WS_BYTES}
s_mov_b32 s35, 0x20000
s_mul_i32 s36, s23, 14336
s_lshl_b32 s37, s22, 7
s_add_u32 s36, s36, s37
s_lshl_b32 s37, s23, 11
s_lshl_b32 s39, s20, 6
s_lshl_b32 s38, s21, 2
s_add_u32 s39, s39, s38
s_add_u32 s39, s39, s23
s_mul_i32 s39, s39, {O_RT}
s_add_u32 s39, s39, {O_OFF}
""")
    BF = 64
    for blk in range(7):
        for q in range(2):
            a(f"s_add_u32 s38, s36, {(blk*64 + 8*q)*896}")
            a(f"s_add_u32 m0, s37, {(blk*64 + 8*q)*128}")
            a("buffer_load_dwordx4 v2, s[24:27], s38 offen lds")
        for k in range(4):
            st = blk * 4 + k
            d = BF + 4 * st
            a(f"buffer_load_dwordx4 v[{d}:{d+3}], v3, s[32:35], s39 offen offset:{k*1024}")
        a("s_add_u32 s39, s39, 4096")
        if blk < 2:
            a("s_barrier")
    a("""
v_lshrrev_b32 v10, 5, v1
v_lshlrev_b32 v10, 3, v10
v_and_b32 v11, 15, v1
v_lshrrev_b32 v12, 2, v11
v_add_u32 v10, v10, v12
v_lshlrev_b32 v10, 7, v10
v_lshrrev_b32 v12, 3, v11
v_lshlrev_b32 v12, 2, v12
v_lshrrev_b32 v13, 4, v1
v_and_b32 v13, 1, v13
v_lshlrev_b32 v13, 1, v13
v_add_u32 v12, v12, v13
v_and_b32 v13, 3, v11
v_lshrrev_b32 v14, 1, v13
v_add_u32 v12, v12, v14
v_lshlrev_b32 v12, 4, v12
v_and_b32 v13, 1, v13
v_lshlrev_b32 v13, 3, v13
v_add3_u32 v8, v10, v12, v13
v_xor_b32 v9, 64, v8
""")
    ACC = (16, 32)
    AF = (48, 56)

    def a_reads(st):
        for nt2 in range(2):
            d = AF[st & 1] + 4 * nt2
            for e in range(2):
                a(f"ds_read_b64_tr_b16 v[{d+2*e}:{d+2*e+1}], v{8+nt2} offset:{(16*st + 4*e)*128}")

    for st in range(28):
        blk, k = st >> 2, st & 3
        if k == 0:
            a(f"s_waitcnt vmcnt({6*(6-blk)})")
            a("s_barrier")
            if blk == 0:
                stamp(a, 1)
            a_reads(st)
        n = 0
        if k < 3:
            a_reads(st + 1)
            n = 4
        a(f"s_waitcnt lgkmcnt({n})")
        for nt2 in range(2):
            acc = ACC[nt2]
            cc = "0" if st == 0 else f"v[{acc}:{acc+15}]"
            d = AF[st & 1] + 4 * nt2
            bfr = BF + 4 * st
            a(f"v_mfma_f32_32x32x16_bf16 v[{acc}:{acc+15}], v[{d}:{d+3}], v[{bfr}:{bfr+3}], {cc}")
    stamp(a, 2)
    a("""
v_and_b32 v10, 31, v1
v_lshrrev_b32 v11, 5, v1
v_mul_u32_u24 v10, 1792, v10
v_lshlrev_b32 v11, 4, v11
v_add_u32 v10, v10, v11
s_lshl_b32 s36, s21, 7
s_lshl_b32 s37, s23, 5
s_add_u32 s36, s36, s37
s_mul_i32 s36, s36, 1792
s_mul_i32 s37, s20, 896
s_add_u32 s36, s36, s37
s_lshl_b32 s37, s22, 7
s_add_u32 s36, s36, s37
""")
    for nt2 in range(2):
        acc = ACC[nt2]
        pack(a, acc, acc)
        for p in range(2):
            b = acc + 4 * p
            a(f"v_permlane32_swap_b32 v{b}, v{b+2}")
            a(f"v_permlane32_swap_b32 v{b+1}, v{b+3}")
            a(f"buffer_store_dwordx4 v[{b}:{b+3}], v10, s[28:31], s36 offen offset:{nt2*64 + p*32}")
    stamp_out(a, 4, 2)
    a.label("K3_END")
    a("s_endpgm")
    return a.finish()


def desc(name, vgpr, sgpr):
    acc = (vgpr + 3) // 4 * 4
    return f""".amdhsa_kernel {name}
  .amdhsa_next_free_vgpr {vgpr}
  .amdhsa_next_free_sgpr {sgpr}
  .amdhsa_accum_offset {acc}
  .amdhsa_group_segment_fixed_size 0
  .amdhsa_kernarg_size 72
  .amdhsa_user_sgpr_count 2
  .amdhsa_user_sgpr_kernarg_segment_ptr 1
  .amdhsa_system_sgpr_workgroup_id_x 1
.end_amdhsa_kernel
"""


def main():
    out = HEADER
    out += f"; @launch kernel={KN} grid=(224,1,1) block=(512,1,1) lds={K1_LDS}\n"
    out += f"; @launch kernel={KN} grid=(256,1,1) block=(512,1,1) lds={K2_LDS}\n"
    out += f"; @launch kernel={KN} grid=(224,1,1) block=(256,1,1) lds={K3_LDS}\n"
    out += '.amdgcn_target "amdgcn-amd-amdhsa--gfx950"\n.text\n'
    out += k1()
    out += k2()
    out += k3()
    out += '.section .rodata,"a"\n.p2align 6\n'
    out += desc(KN, 240, 102)
    args = [x for x in sys.argv[1:] if not x.startswith("--")]
    path = args[0] if args else f"cdna_kernels/{NAME}.s"
    open(path, "w").write(out)


main()
```

```python
import sys, struct, math
sys.path.insert(0, "dev")
from asmlib import Asm

NAME = "concat_heads__sliding_block__sliding_block__prompt"
HEADER = open(f"cdna_kernels/{NAME}.s.ref").read().split("; Override launch geometry")[0]
STAMPS = "--stamp" in sys.argv
TOUCH = False
PRO = 1 if "--p1" in sys.argv else 2
STMOD = [x[5:].replace("_", " ") for x in sys.argv if x.startswith("--st=")]
STMOD = STMOD[0] if STMOD else ""
TI = [int(x[5:]) for x in sys.argv if x.startswith("--ti=")]
TI = TI[0] if TI else 4
RR = [int(x[4:]) for x in sys.argv if x.startswith("--r=")]
RR = RR[0] if RR else 3
if RR == 1:
    ROT = "s_mov_b32 s74, 0"
elif RR == 2:
    ROT = "s_add_u32 s39, s39, s22\ns_and_b32 s39, s39, 1\ns_mul_i32 s74, s39, 3"
elif RR == 3:
    ROT = "s_add_u32 s39, s39, s22\ns_mul_i32 s38, s39, 86\ns_lshr_b32 s38, s38, 8\ns_mul_i32 s38, s38, 3\ns_sub_u32 s39, s39, s38\ns_lshl_b32 s74, s39, 1"
elif RR == 4:
    ROT = "s_add_u32 s39, s39, s22\ns_and_b32 s39, s39, 3\ns_mul_i32 s74, s39, 7\ns_lshr_b32 s74, s74, 2"
else:
    ROT = "s_lshl_b32 s39, s39, 1\ns_add_u32 s39, s39, s22\ns_cmp_ge_u32 s39, 7\ns_cselect_b32 s38, 7, 0\ns_sub_u32 s74, s39, s38"


KN = "fused_kernel"


def ldsu(n):
    return (n + 1279) // 1280 * 5


def f32bits(x):
    return struct.unpack("<I", struct.pack("<f", x))[0]


XBYTES = 2048 * 896
WBYTES = 448 * 2688
WOBYTES = 448 * 896
OUTBYTES = 2048 * 1792
RT_STRIDE = 336 * 256
QKV_BYTES = 2 * 64 * RT_STRIDE
O_OFF = QKV_BYTES + 4096
O_RT = 56 * 512
WS_BYTES = O_OFF + 2 * 64 * O_RT
STAMP_OFF = 32 << 20
CEXP = (28 ** -0.5) * math.log2(math.e)


def stamp(a, i):
    if STAMPS:
        a("s_waitcnt lgkmcnt(0)")
        a(f"s_memtime s[{80+2*i}:{81+2*i}]")
        a("s_waitcnt lgkmcnt(0)")


def stamp_out(a, n, kidx, last=None):
    if STAMPS:
        a("s_waitcnt vmcnt(0)")
        stamp(a, n - 1 if last is None else last)
        a("s_mov_b32 s34, 0x4000000")
        a("s_lshl_b32 s36, s2, 3")
        a("s_add_u32 s36, s36, s23")
        a("s_lshl_b32 s36, s36, 6")
        a(f"s_add_u32 s36, s36, {STAMP_OFF + kidx * (1 << 20)}")
        a("v_mov_b32 v3, 0")
        a("s_mov_b64 exec, 1")
        for i in range(n):
            a(f"v_mov_b32 v4, s{80+2*i}")
            a(f"buffer_store_dword v4, v3, s[32:35], s36 offen offset:{4*i}")
            a("s_nop 1")


def pack(a, src, dst):
    for i in range(8):
        a(f"v_cvt_pk_bf16_f32 v{dst+i}, v{src+2*i}, v{src+2*i+1}")


K1_STAGE = 40960
K1_LDS = 4 * K1_STAGE
K1_WOFF = 16384


def k1():
    a = Asm()
    a(f"""
.globl {KN}
.p2align 8
.type {KN},@function
{KN}:
s_getreg_b32 s3, hwreg(HW_REG_LDS_ALLOC, 12, 10)
s_cmp_eq_u32 s3, {K2_LDSU}
s_cbranch_scc1 PH2
s_cmp_eq_u32 s3, {K3_LDSU}
s_cbranch_scc1 PH3
s_cmp_ge_u32 s2, 224
s_cbranch_scc1 K1_HELP
""")
    stamp(a, 0)
    a(f"""
s_load_dwordx8 s[4:11], s[0:1], 0
s_load_dwordx4 s[12:15], s[0:1], 32
s_load_dwordx2 s[16:17], s[0:1], 64
s_and_b32 s36, s2, 7
s_lshr_b32 s37, s2, 3
s_and_b32 s20, s36, 1
s_lshr_b32 s38, s36, 1
s_lshl_b32 s38, s38, 2
s_and_b32 s39, s37, 3
s_add_u32 s21, s38, s39
s_lshr_b32 s22, s37, 2
{ROT}
v_lshrrev_b32 v2, 6, v0
v_and_b32 v1, 63, v0
s_nop 0
v_readfirstlane_b32 s23, v2
s_cmp_lt_u32 s23, 4
s_cbranch_scc1 K1_COMPUTE
s_sub_u32 s76, s23, 4
""")
    for ip, vd in enumerate(("v2", "v3", "v4")):
        a(f"""
v_add_u32 v8, {64*ip}, v1
v_mul_u32_u24 v9, 2731, v8
v_lshrrev_b32 v9, 16, v9
v_mul_u32_u24 v10, 24, v9
v_sub_u32 v10, v8, v10
v_lshrrev_b32 v11, 1, v9
v_and_b32 v11, 1, v11
v_lshlrev_b32 v11, 2, v11
v_xor_b32 v10, v10, v11
v_mul_u32_u24 v9, 2688, v9
v_lshlrev_b32 v10, 4, v10
v_add_u32 {vd}, v9, v10
""")
    a("""
v_lshrrev_b32 v8, 3, v1
v_and_b32 v9, 7, v1
v_lshrrev_b32 v10, 4, v1
v_xor_b32 v11, v9, v10
v_mul_u32_u24 v8, 896, v8
v_lshlrev_b32 v12, 4, v11
v_add_u32 v5, v8, v12
v_xor_b32 v11, 4, v11
v_lshlrev_b32 v12, 4, v11
v_add_u32 v6, v8, v12
s_lshl_b32 s36, s21, 7
s_lshl_b32 s37, s76, 5
s_add_u32 s36, s36, s37
s_mul_i32 s70, s36, 896
s_mul_i32 s36, s76, 43008
s_mul_i32 s37, s22, 384
s_add_u32 s71, s36, s37
s_lshl_b32 s72, s76, 12
s_mul_i32 s73, s76, 6144
s_waitcnt lgkmcnt(0)
""")
    a(f"""
s_add_u32 s73, s73, {K1_WOFF}
s_cmp_eq_u32 s20, 0
s_cselect_b32 s24, s4, s10
s_cselect_b32 s25, s5, s11
s_cselect_b32 s28, s6, s12
s_cselect_b32 s29, s7, s13
s_and_b32 s25, s25, 0xffff
s_and_b32 s29, s29, 0xffff
s_mov_b32 s26, {XBYTES}
s_mov_b32 s27, 0x20000
s_mov_b32 s30, {WBYTES}
s_mov_b32 s31, 0x20000
""")

    def dma(i):
        st = (i % 4) * K1_STAGE
        a("s_lshl_b32 s36, s74, 7\ns_add_u32 s36, s36, s70\ns_mul_i32 s37, s74, 172032\ns_add_u32 s37, s37, s71\n"
          "s_add_u32 s74, s74, 1\ns_cmp_eq_u32 s74, 7\ns_cselect_b32 s74, 0, s74")
        for q in range(6):
            a(f"s_add_u32 s38, s37, {(q//3)*8*2688}\ns_add_u32 m0, s73, {st + q*1024}\n"
              f"buffer_load_dwordx4 v{2+q%3}, s[28:31], s38 offen lds")
        for q in range(4):
            a(f"s_add_u32 s38, s36, {q*7168}\ns_add_u32 m0, s72, {st + q*1024}\n"
              f"buffer_load_dwordx4 v{5+(q&1)}, s[24:27], s38 offen lds")

    if PRO == 2:
        dma(0)
        dma(1)
        for i in range(7):
            a(f"s_waitcnt vmcnt({10 if i < 6 else 0})")
            a("s_barrier")
            if i + 2 <= 6:
                dma(i + 2)
    else:
        dma(0)
        a("s_waitcnt vmcnt(0)")
        a("s_barrier")
        dma(1)
        dma(2)
        for i in range(1, 7):
            a(f"s_waitcnt vmcnt({10 if i < 6 else 0})")
            a("s_barrier")
            if i + 2 <= 6:
                dma(i + 2)
    a("s_endpgm")
    a.label("K1_COMPUTE")
    a(f"""
s_and_b32 s36, s23, 1
s_lshl_b32 s36, s36, 13
v_and_b32 v12, 31, v1
v_lshrrev_b32 v13, 5, v1
v_lshrrev_b32 v14, 1, v12
v_and_b32 v14, 7, v14
v_xor_b32 v14, v14, v13
v_lshlrev_b32 v14, 4, v14
v_lshlrev_b32 v15, 7, v12
v_add3_u32 v7, v15, v14, s36
v_xor_b32 v8, 32, v7
v_xor_b32 v9, 64, v7
v_xor_b32 v10, 96, v7
""")
    a(f"""
s_lshr_b32 s36, s23, 1
s_mul_i32 s36, s36, 3
v_lshrrev_b32 v13, 5, v1
v_lshlrev_b32 v13, 3, v13
v_and_b32 v14, 15, v1
v_lshrrev_b32 v15, 2, v14
v_add_u32 v13, v13, v15
v_mul_u32_u24 v13, 384, v13
v_lshrrev_b32 v15, 4, v1
v_and_b32 v15, 1, v15
v_lshlrev_b32 v15, 5, v15
v_and_b32 v12, 3, v14
v_lshlrev_b32 v12, 3, v12
v_add3_u32 v13, v13, v15, v12
v_add_u32 v13, {K1_WOFF}, v13
v_lshrrev_b32 v14, 3, v14
""")
    WA, XA = 160, 172
    for m in range(3):
        a(f"""
s_add_u32 s37, s36, {m}
v_xor_b32 v12, s37, v14
v_lshlrev_b32 v12, 6, v12
v_add_u32 v11, v13, v12
""")
        for s4 in range(4):
            a(f"v_add_u32 v{WA+3*s4+m}, {s4*K1_STAGE}, v11")
    for s4 in range(4):
        for ks in range(4):
            a(f"v_add_u32 v{XA+4*s4+ks}, {s4*K1_STAGE}, v{7+ks}")
    a(f"""
s_waitcnt lgkmcnt(0)
s_mov_b32 s32, s16
s_and_b32 s33, s17, 0xffff
s_mov_b32 s34, {WS_BYTES}
s_mov_b32 s35, 0x20000
v_lshlrev_b32 v2, 3, v1
s_lshl_b32 s36, s20, 6
s_lshl_b32 s37, s21, 2
s_add_u32 s36, s36, s37
s_and_b32 s37, s23, 1
s_lshl_b32 s37, s37, 1
s_add_u32 s36, s36, s37
s_mul_i32 s36, s36, {RT_STRIDE}
s_lshr_b32 s37, s23, 1
s_mul_i32 s37, s37, 3
s_mul_i32 s38, s22, 6
s_add_u32 s37, s37, s38
s_lshl_b32 s37, s37, 11
s_add_u32 s36, s36, s37
""")
    ACC = 16
    XF = (112, 120)
    WF = (128, 140)

    def read_list(step):
        i, ks = step >> 2, step & 3
        s4 = i % 4
        L = []
        d = XF[step & 1]
        L.append(f"ds_read_b128 v[{d}:{d+3}], v{XA+4*s4+ks}")
        for m in range(3):
            dw = WF[step & 1] + 4 * m
            L.append(f"ds_read_b64_tr_b16 v[{dw}:{dw+1}], v{WA+3*s4+m} offset:{(16*ks)*384}")
            L.append(f"ds_read_b64_tr_b16 v[{dw+2}:{dw+3}], v{WA+3*s4+m} offset:{(16*ks+4)*384}")
        L.append(f"ds_read_b128 v[{d+4}:{d+7}], v{XA+4*s4+ks} offset:4096")
        return L

    a("s_barrier")
    stamp(a, 1)
    for r in read_list(0):
        a(r)
    for step in range(28):
        i, ks = step >> 2, step & 3
        fill = []
        if ks == 2 and i + 1 <= 6:
            a("s_barrier")
        if step + 1 < 28:
            fill = read_list(step + 1)
        a("s_waitcnt lgkmcnt(0)")
        order = [(0, 0), (0, 1), (0, 2), (1, 0), (1, 1), (1, 2)]
        for n, (aa, m) in enumerate(order):
            acc = ACC + (aa * 3 + m) * 16
            cc = "0" if step == 0 else f"v[{acc}:{acc+15}]"
            wf = WF[step & 1] + 4 * m
            xf = XF[step & 1] + 4 * aa
            a(f"v_mfma_f32_32x32x16_bf16 v[{acc}:{acc+15}], v[{wf}:{wf+3}], v[{xf}:{xf+3}], {cc}")
            for _ in range(2):
                if fill:
                    a(fill.pop(0))
        for x in fill:
            a(x)
    stamp(a, 2)
    for aa in range(2):
        if aa:
            a(f"s_add_u32 s36, s36, {RT_STRIDE}")
        for m in range(3):
            acc = ACC + (aa * 3 + m) * 16
            pack(a, acc, acc)
            a(f"s_add_u32 s37, s36, {m*2048}")
            for rg in range(4):
                a(f"buffer_store_dwordx2 v[{acc+2*rg}:{acc+2*rg+1}], v2, s[32:35], s37 offen offset:{rg*512} {STMOD}")
    stamp_out(a, 4, 0)
    a.label("K1_END")
    a("s_endpgm")
    a.label("K1_HELP")
    a(f"""
s_cmp_ge_u32 s2, 232
s_cbranch_scc1 K1_END
s_getpc_b64 s[4:5]
K1_PC:
s_sub_u32 s4, s4, K1_PC-{KN}
s_subb_u32 s5, s5, 0
v_lshlrev_b32 v1, 7, v0
s_mov_b32 s6, CODE_END-{KN}-4
v_min_u32 v1, s6, v1
global_load_dword v2, v1, s[4:5]
s_endpgm
""")
    return a.finish()


K2_LDS = 65536
K2_LDSU = ldsu(65536)
K3_LDSU = ldsu(448 * 128)


def k2():
    a = Asm()
    a(f"""
.p2align 6
PH2:
s_cmp_ge_u32 s2, 256
s_cbranch_scc1 K2_END
""")
    stamp(a, 0)
    a(f"""
s_load_dwordx2 s[16:17], s[0:1], 64
s_load_dwordx2 s[4:5], s[0:1], 16
s_load_dwordx2 s[6:7], s[0:1], 40
s_and_b32 s36, s2, 7
s_lshr_b32 s37, s2, 3
s_and_b32 s20, s36, 1
s_and_b32 s38, s36, 6
s_and_b32 s39, s37, 1
s_add_u32 s21, s38, s39
s_lshr_b32 s22, s37, 1
v_lshrrev_b32 v2, 6, v0
v_and_b32 v1, 63, v0
v_and_b32 v13, 31, v1
v_readfirstlane_b32 s23, v2
v_lshrrev_b32 v14, 5, v1
v_lshrrev_b32 v8, 4, v1
v_and_b32 v9, 15, v1
v_lshlrev_b32 v10, 1, v8
v_xor_b32 v10, v9, v10
v_lshlrev_b32 v10, 4, v10
v_lshl_add_u32 v4, v8, 8, v10
v_xor_b32 v5, 0x80, v4
v_add_u32 v5, 0x400, v5
v_lshlrev_b32 v6, 3, v13
v_lshl_add_u32 v6, v14, 9, v6
s_waitcnt lgkmcnt(0)
s_mov_b32 s32, s16
s_and_b32 s33, s17, 0xffff
s_mov_b32 s34, {WS_BYTES}
s_mov_b32 s35, 0x20000
; s36 = ((b*64 + 8t)*336 + 7h)*256
s_lshl_b32 s36, s20, 6
s_lshl_b32 s37, s21, 3
s_add_u32 s36, s36, s37
s_mul_i32 s36, s36, {RT_STRIDE}
s_mul_i32 s37, s22, 1792
s_add_u32 s36, s36, s37
s_mul_i32 s37, s23, {2*RT_STRIDE}
s_add_u32 s38, s36, s37
s_sub_u32 s38, s38, {8*RT_STRIDE - 28672}
s_lshl_b32 s37, s23, 12
s_cmp_eq_u32 s21, 0
s_cselect_b32 s40, 1, 0
s_cmp_lt_u32 s23, 4
s_cselect_b32 s41, 1, 0
s_and_b32 s75, s40, s41
s_cmp_eq_u32 s75, 1
s_cbranch_scc1 K2_FILL
""")
    for u in range(2):
        for q in range(2):
            a(f"s_add_u32 m0, s37, {u*2048 + q*1024}")
            a(f"s_add_u32 s41, s38, {u*RT_STRIDE}")
            a(f"buffer_load_dwordx4 v{4+q}, s[32:35], s41 offen lds")
    a("s_branch K2_Q")
    a.label("K2_FILL")
    a("""
v_mov_b32 v8, 0
v_mov_b32 v9, 0
v_mov_b32 v10, 0
v_mov_b32 v11, 0
v_lshlrev_b32 v12, 4, v1
v_add_u32 v12, s37, v12
""")
    for q in range(4):
        a(f"ds_write_b128 v12, v[8:11] offset:{q*1024}")
        a(f"ds_write_b128 v12, v[8:11] offset:{32768 + q*1024}")
    a("s_waitcnt lgkmcnt(0)")
    a.label("K2_Q")
    a(f"""
s_mul_i32 s39, s23, {RT_STRIDE}
s_add_u32 s39, s39, s36
buffer_load_dwordx2 v[16:17], v6, s[32:35], s39 offen
buffer_load_dwordx2 v[18:19], v6, s[32:35], s39 offen offset:256
buffer_load_dwordx2 v[20:21], v6, s[32:35], s39 offen offset:1024
buffer_load_dwordx2 v[22:23], v6, s[32:35], s39 offen offset:1280
""")
    a("""
v_lshlrev_b32 v15, 2, v14
v_sub_u32 v15, v13, v15
""")
    for r in range(16):
        kr = (r & 3) + 8 * (r >> 2)
        a(f"v_cmp_le_i32 s[{40+2*r}:{41+2*r}], {kr}, v15")
    a(f"""
v_lshrrev_b32 v8, 1, v13
v_xor_b32 v8, 14, v8
v_lshlrev_b32 v8, 4, v8
v_and_b32 v9, 1, v13
v_lshl_add_u32 v8, v9, 3, v8
v_lshl_add_u32 v8, v14, 11, v8
v_add_u32 v8, s37, v8
s_cmp_eq_u32 s75, 1
s_cselect_b32 s36, 0x3f80, 0
v_mov_b32 v10, s36
v_mov_b32 v11, 0
v_mov_b32 v12, 0x3f80
""")
    KA = 56
    VA = 60
    a("s_lshl_b32 s36, s23, 11")
    a("""
v_lshrrev_b32 v2, 1, v13
v_and_b32 v3, 1, v13
v_lshlrev_b32 v3, 3, v3
v_add_u32 v3, s36, v3
""")
    for f in range(2):
        for z in range(2):
            a(f"""
v_lshl_add_u32 v7, v14, 1, {4*f+z}
v_lshlrev_b32 v9, 1, v7
v_and_b32 v9, 15, v9
v_xor_b32 v9, v9, v2
v_lshlrev_b32 v9, 4, v9
v_lshl_add_u32 v9, v7, 8, v9
v_add_u32 v{KA+2*f+z}, v9, v3
""")
    a("""
v_and_b32 v2, 15, v1
v_lshrrev_b32 v3, 4, v1
v_and_b32 v3, 1, v3
v_and_b32 v7, 3, v2
v_lshl_add_u32 v3, v3, 2, v7
v_lshrrev_b32 v2, 2, v2
v_lshl_add_u32 v2, v14, 2, v2
""")
    for f in range(2):
        for e in range(2):
            a(f"""
v_add_u32 v7, {16*f+8*e}, v2
v_lshrrev_b32 v9, 1, v7
v_lshlrev_b32 v15, 1, v3
v_xor_b32 v9, v9, v15
v_lshlrev_b32 v9, 4, v9
v_lshl_add_u32 v9, v3, 8, v9
v_and_b32 v7, 1, v7
v_lshl_add_u32 v9, v7, 3, v9
v_add_u32 v{VA+2*f+e}, s36, v9
""")
    CP = 64
    MP = 66
    T1, T2 = 68, 69
    a(f"v_mov_b32 v{CP}, {f32bits(CEXP)}")
    a(f"v_mov_b32 v{CP+1}, {f32bits(CEXP)}")
    a("""
s_waitcnt vmcnt(0)
ds_write_b64 v8, v[10:11] offset:1792
s_mov_b32 exec_lo, 0
v_mov_b32 v22, 0xdf80
v_mov_b32 v23, 0
s_mov_b64 exec, -1
s_waitcnt lgkmcnt(0)
s_barrier
s_cmp_eq_u32 s75, 1
s_cbranch_scc1 K2_NOV
""")
    for u in range(2):
        for q in range(2):
            a(f"s_add_u32 m0, s37, {32768 + u*2048 + q*1024}")
            a(f"s_add_u32 s77, s38, {u*RT_STRIDE + 28672}")
            a(f"buffer_load_dwordx4 v{4+q}, s[32:35], s77 offen lds")
    a.label("K2_NOV")
    stamp(a, 1)
    QF = 16
    O = 24
    KB = 72
    S = 96
    order = [0, 8, 1, 2, 3, 4, 5, 6, 7]

    def k_read(n):
        j = order[n]
        d = KB + 8 * (n % 3)
        for f in range(2):
            for z in range(2):
                a(f"ds_read_b64 v[{d+4*f+2*z}:{d+4*f+2*z+1}], v{KA+2*f+z} offset:{j*2048}")

    def v_read(n):
        j = n
        d = KB + 8 * (n % 3)
        for f in range(2):
            for e in range(2):
                a(f"ds_read_b64_tr_b16 v[{d+4*f+2*e}:{d+4*f+2*e+1}], v{VA+2*f+e} offset:{32768 + j*2048}")

    def maxes(j, first):
        s = S + 16 * j
        i = 0
        if first:
            a(f"v_max3_f32 v{T1}, v{s}, v{s+1}, v{s+2}")
            a(f"v_max_f32 v{T1}, v{T1}, v{s+3}")
            i = 4
        while i < 16:
            a(f"v_max3_f32 v{T1}, v{T1}, v{s+i}, v{s+i+1}")
            i += 2

    k_read(0)
    k_read(1)
    for n in range(9):
        if n + 2 < 9:
            k_read(n + 2)
        rem = min(9 - n - 1, 2)
        a(f"s_waitcnt lgkmcnt({4*rem})")
        j = order[n]
        d = KB + 8 * (n % 3)
        s = S + 16 * j
        a(f"v_mfma_f32_32x32x16_bf16 v[{s}:{s+15}], v[{d}:{d+3}], v[{QF}:{QF+3}], 0")
        a(f"v_mfma_f32_32x32x16_bf16 v[{s}:{s+15}], v[{d+4}:{d+7}], v[{QF+4}:{QF+7}], v[{s}:{s+15}]")
        if n == 3:
            for r in range(16):
                a(f"v_cndmask_b32 v{S+r}, v{S+r}, v{S+128+r}, s[{40+2*r}:{41+2*r}]")
        if n == 4:
            maxes(0, True)
        if n >= 4:
            maxes(order[n - 2], False)
    a("""
s_waitcnt vmcnt(0)
v_mov_b32 v13, 0
""")
    a("ds_write_b64 v8, v[12:13] offset:34560")
    maxes(order[7], False)
    a("s_waitcnt lgkmcnt(0)")
    a("s_barrier")
    maxes(order[8], False)
    stamp(a, 2)
    a(f"""
s_cmp_eq_u32 s20, 0
s_cselect_b32 s24, s4, s6
s_cselect_b32 s25, s5, s7
s_and_b32 s25, s25, 0xffff
s_mov_b32 s26, {WOBYTES}
s_mov_b32 s27, 0x20000
s_lshr_b32 s36, s2, 3
s_lshl_b32 s36, s36, 3
s_add_u32 s36, s36, s23
s_mul_i32 s36, s36, 1664
v_and_b32 v2, 15, v1
v_lshlrev_b32 v2, 7, v2
buffer_load_dword v48, v2, s[24:27], s36 offen
""")
    v_read(0)
    v_read(1)
    a(f"v_mov_b32 v{T2}, v{T1}")
    a(f"v_permlane32_swap_b32 v{T1}, v{T2}")
    a(f"v_max_f32 v{T1}, v{T1}, v{T2}")
    a(f"v_mul_f32 v{MP}, v{CP}, v{T1}")
    a(f"v_xor_b32 v{MP}, 0x80000000, v{MP}")
    a(f"v_mov_b32 v{MP+1}, v{MP}")

    def expo(j):
        s = S + 16 * j
        for r in range(0, 16, 2):
            a(f"v_pk_fma_f32 v[{s+r}:{s+r+1}], v[{s+r}:{s+r+1}], v[{CP}:{CP+1}], v[{MP}:{MP+1}]")
        for r in range(16):
            a(f"v_exp_f32 v{s+r}, v{s+r}")

    expo(0)
    for r in range(16):
        a(f"v_cndmask_b32 v{S+128+r}, 0, v{S+r}, s[{40+2*r}:{41+2*r}]")
    for r in range(16):
        a(f"v_sub_f32 v{S+r}, v{S+r}, v{S+128+r}")
    pack(a, S, S)
    pack(a, S + 128, S + 128)
    for n in range(9):
        j = n
        s = S + 16 * j
        if n + 2 < 9:
            v_read(n + 2)
        rem = min(9 - n - 1, 2)
        a(f"s_waitcnt lgkmcnt({4*rem})")
        d = KB + 8 * (n % 3)
        cc = "0" if n == 0 else f"v[{O}:{O+15}]"
        a(f"v_mfma_f32_32x32x16_bf16 v[{O}:{O+15}], v[{d}:{d+3}], v[{s}:{s+3}], {cc}")
        a(f"v_mfma_f32_32x32x16_bf16 v[{O}:{O+15}], v[{d+4}:{d+7}], v[{s+4}:{s+7}], v[{O}:{O+15}]")
        if j + 1 <= 7:
            expo(j + 1)
            pack(a, S + 16 * (j + 1), S + 16 * (j + 1))
    stamp(a, 3)
    a(f"""
v_and_b32 v13, 31, v1
s_mul_i32 s37, s22, 7
v_add_u32 v2, s37, v14
v_lshlrev_b32 v3, 4, v13
s_lshl_b32 s36, s20, 6
s_lshl_b32 s37, s21, 3
s_add_u32 s36, s36, s37
s_add_u32 s36, s36, s23
s_mul_i32 s36, s36, {O_RT}
s_add_u32 s36, s36, {O_OFF}
v_lshrrev_b32 v4, 1, v2
v_and_b32 v5, 1, v2
v_lshl_add_u32 v4, v4, 9, v3
v_lshl_add_u32 v4, v5, 3, v4
""")
    a(f"v_mov_b32 v{T1}, v{O+12}")
    a(f"v_mov_b32 v{T2}, v{O+12}")
    a(f"v_permlane32_swap_b32 v{T1}, v{T2}")
    a(f"v_rcp_f32 v{T2}, v{T2}")
    for r in range(16):
        a(f"v_mul_f32 v{O+r}, v{O+r}, v{T2}")
    pack(a, O, O)
    for rg in range(4):
        if rg == 3:
            a("s_mov_b32 exec_hi, 0")
        a(f"buffer_store_dwordx2 v[{O+2*rg}:{O+2*rg+1}], v4, s[32:35], s36 offen offset:{rg*512}")
    a("s_mov_b64 exec, -1")
    stamp_out(a, 5, 1)
    a.label("K2_END")
    a("s_endpgm")
    return a.finish()


K3_LDS = 448 * 128


def k3():
    a = Asm()
    a(f"""
.p2align 6
PH3:
s_cmp_ge_u32 s2, 224
s_cbranch_scc1 K3_END
""")
    stamp(a, 0)
    a(f"""
s_load_dwordx2 s[4:5], s[0:1], 16
s_load_dwordx2 s[6:7], s[0:1], 40
s_load_dwordx2 s[8:9], s[0:1], 48
s_load_dwordx2 s[10:11], s[0:1], 64
s_and_b32 s36, s2, 7
s_lshr_b32 s37, s2, 3
s_and_b32 s20, s36, 1
s_lshr_b32 s38, s36, 1
s_lshl_b32 s38, s38, 2
s_and_b32 s39, s37, 3
s_add_u32 s21, s38, s39
s_lshr_b32 s22, s37, 2
v_lshrrev_b32 v2, 6, v0
v_and_b32 v1, 63, v0
v_lshrrev_b32 v8, 3, v1
v_readfirstlane_b32 s23, v2
s_cmp_lt_u32 s23, 4
s_cbranch_scc1 K3_COMPUTE
s_sub_u32 s76, s23, 4
v_and_b32 v9, 7, v1
v_lshrrev_b32 v10, 4, v1
v_and_b32 v10, 1, v10
v_lshlrev_b32 v10, 2, v10
v_xor_b32 v9, v9, v10
v_mul_u32_u24 v8, 896, v8
v_lshlrev_b32 v9, 4, v9
v_add_u32 v2, v8, v9
s_mul_i32 s36, s76, 14336
s_lshl_b32 s37, s22, 7
s_add_u32 s36, s36, s37
s_lshl_b32 s37, s76, 11
s_waitcnt lgkmcnt(0)
s_cmp_eq_u32 s20, 0
s_cselect_b32 s24, s4, s6
s_cselect_b32 s25, s5, s7
s_and_b32 s25, s25, 0xffff
s_mov_b32 s26, {WOBYTES}
s_mov_b32 s27, 0x20000
""")
    for blk in range(7):
        for q in range(2):
            a(f"s_add_u32 s38, s36, {(blk*64 + 8*q)*896}")
            a(f"s_add_u32 m0, s37, {(blk*64 + 8*q)*128}")
            a("buffer_load_dwordx4 v2, s[24:27], s38 offen lds")
    for blk in range(7):
        a(f"s_waitcnt vmcnt({2*(6-blk)})")
        a("s_barrier")
    a("s_endpgm")
    a.label("K3_COMPUTE")
    a(f"""
v_lshlrev_b32 v3, 4, v1
s_lshl_b32 s39, s20, 6
s_lshl_b32 s38, s21, 2
s_add_u32 s39, s39, s38
s_add_u32 s39, s39, s23
s_mul_i32 s39, s39, {O_RT}
s_add_u32 s39, s39, {O_OFF}
s_waitcnt lgkmcnt(0)
s_mov_b32 s32, s10
s_and_b32 s33, s11, 0xffff
s_mov_b32 s34, {WS_BYTES}
s_mov_b32 s35, 0x20000
""")
    BF = 64

    def o_loads(blk):
        for k in range(4):
            st = blk * 4 + k
            d = BF + 4 * st
            a(f"buffer_load_dwordx4 v[{d}:{d+3}], v3, s[32:35], s39 offen offset:{k*1024}")
        a("s_add_u32 s39, s39, 4096")

    PRE = 3
    for blk in range(PRE):
        o_loads(blk)
    a(f"""
s_mov_b32 s28, s8
s_and_b32 s29, s9, 0xffff
s_mov_b32 s30, {OUTBYTES}
s_mov_b32 s31, 0x20000
v_lshrrev_b32 v10, 5, v1
v_lshlrev_b32 v10, 3, v10
v_and_b32 v11, 15, v1
v_lshrrev_b32 v12, 2, v11
v_add_u32 v10, v10, v12
v_lshlrev_b32 v10, 7, v10
v_lshrrev_b32 v12, 3, v11
v_lshlrev_b32 v12, 2, v12
v_lshrrev_b32 v13, 4, v1
v_and_b32 v13, 1, v13
v_lshlrev_b32 v13, 1, v13
v_add_u32 v12, v12, v13
v_and_b32 v13, 3, v11
v_lshrrev_b32 v14, 1, v13
v_add_u32 v12, v12, v14
v_lshlrev_b32 v12, 4, v12
v_and_b32 v13, 1, v13
v_lshlrev_b32 v13, 3, v13
v_add3_u32 v8, v10, v12, v13
v_xor_b32 v9, 64, v8
v_and_b32 v10, 31, v1
v_lshrrev_b32 v11, 5, v1
v_mul_u32_u24 v10, 1792, v10
v_lshlrev_b32 v11, 4, v11
v_add_u32 v10, v10, v11
s_lshl_b32 s36, s21, 7
s_lshl_b32 s37, s23, 5
s_add_u32 s36, s36, s37
s_mul_i32 s36, s36, 1792
s_mul_i32 s37, s20, 896
s_add_u32 s36, s36, s37
s_lshl_b32 s37, s22, 7
s_add_u32 s36, s36, s37
""")
    ACC = (16, 32)
    AF = (48, 56)

    def a_reads(st):
        for nt2 in range(2):
            d = AF[st & 1] + 4 * nt2
            for e in range(2):
                a(f"ds_read_b64_tr_b16 v[{d+2*e}:{d+2*e+1}], v{8+nt2} offset:{(16*st + 4*e)*128}")

    for st in range(28):
        blk, k = st >> 2, st & 3
        if k == 0:
            a("s_barrier")
            if blk == 0:
                stamp(a, 1)
            a_reads(st)
            if blk + PRE <= 6:
                o_loads(blk + PRE)
            outstanding = min(6 - blk, PRE) * 4
            a(f"s_waitcnt vmcnt({outstanding})")
        n = 0
        if k < 3:
            a_reads(st + 1)
            n = 4
        a(f"s_waitcnt lgkmcnt({n})")
        for nt2 in range(2):
            acc = ACC[nt2]
            cc = "0" if st == 0 else f"v[{acc}:{acc+15}]"
            d = AF[st & 1] + 4 * nt2
            bfr = BF + 4 * st
            a(f"v_mfma_f32_32x32x16_bf16 v[{acc}:{acc+15}], v[{d}:{d+3}], v[{bfr}:{bfr+3}], {cc}")
    stamp(a, 2)
    for nt2 in range(2):
        acc = ACC[nt2]
        pack(a, acc, acc)
        for p in range(2):
            b = acc + 4 * p
            a(f"v_permlane32_swap_b32 v{b}, v{b+2}")
            a(f"v_permlane32_swap_b32 v{b+1}, v{b+3}")
            a(f"buffer_store_dwordx4 v[{b}:{b+3}], v10, s[28:31], s36 offen offset:{nt2*64 + p*32}")
    stamp_out(a, 4, 2)
    a.label("K3_END")
    a("s_endpgm")
    return a.finish()


def desc(name, vgpr, sgpr):
    acc = (vgpr + 3) // 4 * 4
    return f""".amdhsa_kernel {name}
  .amdhsa_next_free_vgpr {vgpr}
  .amdhsa_next_free_sgpr {sgpr}
  .amdhsa_accum_offset {acc}
  .amdhsa_group_segment_fixed_size 0
  .amdhsa_kernarg_size 72
  .amdhsa_user_sgpr_count 2
  .amdhsa_user_sgpr_kernarg_segment_ptr 1
  .amdhsa_system_sgpr_workgroup_id_x 1
.end_amdhsa_kernel
"""


def main():
    out = HEADER
    out += f"; @launch kernel={KN} grid=(232,1,1) block=(512,1,1) lds={K1_LDS}\n"
    out += f"; @launch kernel={KN} grid=(256,1,1) block=(512,1,1) lds={K2_LDS}\n"
    out += f"; @launch kernel={KN} grid=(224,1,1) block=(512,1,1) lds={K3_LDS}\n"
    out += '.amdgcn_target "amdgcn-amd-amdhsa--gfx950"\n.text\n'
    out += k1()
    out += k2()
    out += k3()
    out += "CODE_END:\n"
    out += '.section .rodata,"a"\n.p2align 6\n'
    out += desc(KN, 240, 102)
    args = [x for x in sys.argv[1:] if not x.startswith("--")]
    path = args[0] if args else f"cdna_kernels/{NAME}.s"
    open(path, "w").write(out)


main()
```

```python
import sys, struct, math
sys.path.insert(0, "dev")
from asmlib import Asm

NAME = "concat_heads__sliding_block__sliding_block__prompt"
HEADER = open(f"cdna_kernels/{NAME}.s.ref").read().split("; Override launch geometry")[0]
STAMPS = "--stamp" in sys.argv
TOUCH = False
PRO = 1 if "--p1" in sys.argv else 2
STMOD = [x[5:].replace("_", " ") for x in sys.argv if x.startswith("--st=")]
STMOD = STMOD[0] if STMOD else "sc1"
OSC = "sc1" if "--osc1" in sys.argv else ""
OUTSC = "sc1" if "--outsc1" in sys.argv else ("nt" if "--outnt" in sys.argv else "")
TI = [int(x[5:]) for x in sys.argv if x.startswith("--ti=")]
TI = TI[0] if TI else 4
RR = [int(x[4:]) for x in sys.argv if x.startswith("--r=")]
RR = RR[0] if RR else 3
if RR == 1:
    ROT = "s_mov_b32 s74, 0"
elif RR == 2:
    ROT = "s_add_u32 s39, s39, s22\ns_and_b32 s39, s39, 1\ns_mul_i32 s74, s39, 3"
elif RR == 3:
    ROT = "s_add_u32 s39, s39, s22\ns_mul_i32 s38, s39, 86\ns_lshr_b32 s38, s38, 8\ns_mul_i32 s38, s38, 3\ns_sub_u32 s39, s39, s38\ns_lshl_b32 s74, s39, 1"
elif RR == 4:
    ROT = "s_add_u32 s39, s39, s22\ns_and_b32 s39, s39, 3\ns_mul_i32 s74, s39, 7\ns_lshr_b32 s74, s74, 2"
else:
    ROT = "s_lshl_b32 s39, s39, 1\ns_add_u32 s39, s39, s22\ns_cmp_ge_u32 s39, 7\ns_cselect_b32 s38, 7, 0\ns_sub_u32 s74, s39, s38"


KN = "fused_kernel"


def ldsu(n):
    return (n + 1279) // 1280 * 5


def f32bits(x):
    return struct.unpack("<I", struct.pack("<f", x))[0]


XBYTES = 2048 * 896
WBYTES = 448 * 2688
WOBYTES = 448 * 896
OUTBYTES = 2048 * 1792
RT_STRIDE = 336 * 256
QKV_BYTES = 2 * 64 * RT_STRIDE
O_OFF = QKV_BYTES + 4096
O_RT = 56 * 512
WS_BYTES = O_OFF + 2 * 64 * O_RT
STAMP_OFF = 32 << 20
CEXP = (28 ** -0.5) * math.log2(math.e)


def stamp(a, i):
    if STAMPS:
        a("s_waitcnt lgkmcnt(0)")
        a(f"s_memtime s[{80+2*i}:{81+2*i}]")
        a("s_waitcnt lgkmcnt(0)")


def stamp_out(a, n, kidx, last=None):
    if STAMPS:
        a("s_waitcnt vmcnt(0)")
        stamp(a, n - 1 if last is None else last)
        a("s_mov_b32 s34, 0x4000000")
        a("s_lshl_b32 s36, s2, 3")
        a("s_add_u32 s36, s36, s23")
        a("s_lshl_b32 s36, s36, 6")
        a(f"s_add_u32 s36, s36, {STAMP_OFF + kidx * (1 << 20)}")
        a("v_mov_b32 v3, 0")
        a("s_mov_b64 exec, 1")
        for i in range(n):
            a(f"v_mov_b32 v4, s{80+2*i}")
            a(f"buffer_store_dword v4, v3, s[32:35], s36 offen offset:{4*i}")
            a("s_nop 1")


def pack(a, src, dst):
    for i in range(8):
        a(f"v_cvt_pk_bf16_f32 v{dst+i}, v{src+2*i}, v{src+2*i+1}")


K1_STAGE = 40960
K1_LDS = 4 * K1_STAGE
K1_WOFF = 16384


def k1():
    a = Asm()
    a(f"""
.globl {KN}
.p2align 8
.type {KN},@function
{KN}:
s_getreg_b32 s3, hwreg(HW_REG_LDS_ALLOC, 12, 10)
s_cmp_eq_u32 s3, {K2_LDSU}
s_cbranch_scc1 PH2
s_cmp_eq_u32 s3, {K3_LDSU}
s_cbranch_scc1 PH3
s_cmp_ge_u32 s2, 224
s_cbranch_scc1 K1_HELP
""")
    stamp(a, 0)
    a(f"""
s_load_dwordx8 s[4:11], s[0:1], 0
s_load_dwordx4 s[12:15], s[0:1], 32
s_load_dwordx2 s[16:17], s[0:1], 64
s_and_b32 s36, s2, 7
s_lshr_b32 s37, s2, 3
s_and_b32 s20, s36, 1
s_lshr_b32 s38, s36, 1
s_lshl_b32 s38, s38, 2
s_and_b32 s39, s37, 3
s_add_u32 s21, s38, s39
s_lshr_b32 s22, s37, 2
{ROT}
v_lshrrev_b32 v2, 6, v0
v_and_b32 v1, 63, v0
s_nop 0
v_readfirstlane_b32 s23, v2
s_cmp_lt_u32 s23, 4
s_cbranch_scc1 K1_COMPUTE
s_sub_u32 s76, s23, 4
""")
    for ip, vd in enumerate(("v2", "v3", "v4")):
        a(f"""
v_add_u32 v8, {64*ip}, v1
v_mul_u32_u24 v9, 2731, v8
v_lshrrev_b32 v9, 16, v9
v_mul_u32_u24 v10, 24, v9
v_sub_u32 v10, v8, v10
v_lshrrev_b32 v11, 1, v9
v_and_b32 v11, 1, v11
v_lshlrev_b32 v11, 2, v11
v_xor_b32 v10, v10, v11
v_mul_u32_u24 v9, 2688, v9
v_lshlrev_b32 v10, 4, v10
v_add_u32 {vd}, v9, v10
""")
    a("""
v_lshrrev_b32 v8, 3, v1
v_and_b32 v9, 7, v1
v_lshrrev_b32 v10, 4, v1
v_xor_b32 v11, v9, v10
v_mul_u32_u24 v8, 896, v8
v_lshlrev_b32 v12, 4, v11
v_add_u32 v5, v8, v12
v_xor_b32 v11, 4, v11
v_lshlrev_b32 v12, 4, v11
v_add_u32 v6, v8, v12
s_lshl_b32 s36, s21, 7
s_lshl_b32 s37, s76, 5
s_add_u32 s36, s36, s37
s_mul_i32 s70, s36, 896
s_mul_i32 s36, s76, 43008
s_mul_i32 s37, s22, 384
s_add_u32 s71, s36, s37
s_lshl_b32 s72, s76, 12
s_mul_i32 s73, s76, 6144
s_waitcnt lgkmcnt(0)
""")
    a(f"""
s_add_u32 s73, s73, {K1_WOFF}
s_cmp_eq_u32 s20, 0
s_cselect_b32 s24, s4, s10
s_cselect_b32 s25, s5, s11
s_cselect_b32 s28, s6, s12
s_cselect_b32 s29, s7, s13
s_and_b32 s25, s25, 0xffff
s_and_b32 s29, s29, 0xffff
s_mov_b32 s26, {XBYTES}
s_mov_b32 s27, 0x20000
s_mov_b32 s30, {WBYTES}
s_mov_b32 s31, 0x20000
""")

    def dma(i):
        st = (i % 4) * K1_STAGE
        a("s_lshl_b32 s36, s74, 7\ns_add_u32 s36, s36, s70\ns_mul_i32 s37, s74, 172032\ns_add_u32 s37, s37, s71\n"
          "s_add_u32 s74, s74, 1\ns_cmp_eq_u32 s74, 7\ns_cselect_b32 s74, 0, s74")
        for q in range(6):
            a(f"s_add_u32 s38, s37, {(q//3)*8*2688}\ns_add_u32 m0, s73, {st + q*1024}\n"
              f"buffer_load_dwordx4 v{2+q%3}, s[28:31], s38 offen lds")
        for q in range(4):
            a(f"s_add_u32 s38, s36, {q*7168}\ns_add_u32 m0, s72, {st + q*1024}\n"
              f"buffer_load_dwordx4 v{5+(q&1)}, s[24:27], s38 offen lds")

    if PRO == 2:
        dma(0)
        dma(1)
        for i in range(7):
            a(f"s_waitcnt vmcnt({10 if i < 6 else 0})")
            a("s_barrier")
            if i + 2 <= 6:
                dma(i + 2)
    else:
        dma(0)
        a("s_waitcnt vmcnt(0)")
        a("s_barrier")
        dma(1)
        dma(2)
        for i in range(1, 7):
            a(f"s_waitcnt vmcnt({10 if i < 6 else 0})")
            a("s_barrier")
            if i + 2 <= 6:
                dma(i + 2)
    a("s_endpgm")
    a.label("K1_COMPUTE")
    a(f"""
s_and_b32 s36, s23, 1
s_lshl_b32 s36, s36, 13
v_and_b32 v12, 31, v1
v_lshrrev_b32 v13, 5, v1
v_lshrrev_b32 v14, 1, v12
v_and_b32 v14, 7, v14
v_xor_b32 v14, v14, v13
v_lshlrev_b32 v14, 4, v14
v_lshlrev_b32 v15, 7, v12
v_add3_u32 v7, v15, v14, s36
v_xor_b32 v8, 32, v7
v_xor_b32 v9, 64, v7
v_xor_b32 v10, 96, v7
""")
    a(f"""
s_lshr_b32 s36, s23, 1
s_mul_i32 s36, s36, 3
v_lshrrev_b32 v13, 5, v1
v_lshlrev_b32 v13, 3, v13
v_and_b32 v14, 15, v1
v_lshrrev_b32 v15, 2, v14
v_add_u32 v13, v13, v15
v_mul_u32_u24 v13, 384, v13
v_lshrrev_b32 v15, 4, v1
v_and_b32 v15, 1, v15
v_lshlrev_b32 v15, 5, v15
v_and_b32 v12, 3, v14
v_lshlrev_b32 v12, 3, v12
v_add3_u32 v13, v13, v15, v12
v_add_u32 v13, {K1_WOFF}, v13
v_lshrrev_b32 v14, 3, v14
""")
    WA, XA = 160, 172
    for m in range(3):
        a(f"""
s_add_u32 s37, s36, {m}
v_xor_b32 v12, s37, v14
v_lshlrev_b32 v12, 6, v12
v_add_u32 v11, v13, v12
""")
        for s4 in range(4):
            a(f"v_add_u32 v{WA+3*s4+m}, {s4*K1_STAGE}, v11")
    for s4 in range(4):
        for ks in range(4):
            a(f"v_add_u32 v{XA+4*s4+ks}, {s4*K1_STAGE}, v{7+ks}")
    a(f"""
s_waitcnt lgkmcnt(0)
s_mov_b32 s32, s16
s_and_b32 s33, s17, 0xffff
s_mov_b32 s34, {WS_BYTES}
s_mov_b32 s35, 0x20000
v_lshlrev_b32 v2, 3, v1
s_lshl_b32 s36, s20, 6
s_lshl_b32 s37, s21, 2
s_add_u32 s36, s36, s37
s_and_b32 s37, s23, 1
s_lshl_b32 s37, s37, 1
s_add_u32 s36, s36, s37
s_mul_i32 s36, s36, {RT_STRIDE}
s_lshr_b32 s37, s23, 1
s_mul_i32 s37, s37, 3
s_mul_i32 s38, s22, 6
s_add_u32 s37, s37, s38
s_lshl_b32 s37, s37, 11
s_add_u32 s36, s36, s37
""")
    ACC = 16
    XF = (112, 120)
    WF = (128, 140)

    def read_list(step):
        i, ks = step >> 2, step & 3
        s4 = i % 4
        L = []
        d = XF[step & 1]
        L.append(f"ds_read_b128 v[{d}:{d+3}], v{XA+4*s4+ks}")
        for m in range(3):
            dw = WF[step & 1] + 4 * m
            L.append(f"ds_read_b64_tr_b16 v[{dw}:{dw+1}], v{WA+3*s4+m} offset:{(16*ks)*384}")
            L.append(f"ds_read_b64_tr_b16 v[{dw+2}:{dw+3}], v{WA+3*s4+m} offset:{(16*ks+4)*384}")
        L.append(f"ds_read_b128 v[{d+4}:{d+7}], v{XA+4*s4+ks} offset:4096")
        return L

    a("s_barrier")
    stamp(a, 1)
    for r in read_list(0):
        a(r)
    for step in range(28):
        i, ks = step >> 2, step & 3
        fill = []
        if ks == 2 and i + 1 <= 6:
            a("s_barrier")
        if step + 1 < 28:
            fill = read_list(step + 1)
        a("s_waitcnt lgkmcnt(0)")
        order = [(0, 0), (0, 1), (0, 2), (1, 0), (1, 1), (1, 2)]
        for n, (aa, m) in enumerate(order):
            acc = ACC + (aa * 3 + m) * 16
            cc = "0" if step == 0 else f"v[{acc}:{acc+15}]"
            wf = WF[step & 1] + 4 * m
            xf = XF[step & 1] + 4 * aa
            a(f"v_mfma_f32_32x32x16_bf16 v[{acc}:{acc+15}], v[{wf}:{wf+3}], v[{xf}:{xf+3}], {cc}")
            for _ in range(2):
                if fill:
                    a(fill.pop(0))
        for x in fill:
            a(x)
    stamp(a, 2)
    for aa in range(2):
        if aa:
            a(f"s_add_u32 s36, s36, {RT_STRIDE}")
        for m in range(3):
            acc = ACC + (aa * 3 + m) * 16
            pack(a, acc, acc)
            a(f"s_add_u32 s37, s36, {m*2048}")
            for rg in range(4):
                a(f"buffer_store_dwordx2 v[{acc+2*rg}:{acc+2*rg+1}], v2, s[32:35], s37 offen offset:{rg*512} {STMOD}")
    stamp_out(a, 4, 0)
    a.label("K1_END")
    a("s_endpgm")
    a.label("K1_HELP")
    a(f"""
s_cmp_ge_u32 s2, 232
s_cbranch_scc1 K1_END
s_getpc_b64 s[4:5]
K1_PC:
s_sub_u32 s4, s4, K1_PC-{KN}
s_subb_u32 s5, s5, 0
v_lshlrev_b32 v1, 7, v0
s_mov_b32 s6, CODE_END-{KN}-4
v_min_u32 v1, s6, v1
global_load_dword v2, v1, s[4:5]
s_endpgm
""")
    return a.finish()


K2_LDS = 65536
K2_LDSU = ldsu(65536)
K3_LDSU = ldsu(448 * 128)


def k2():
    a = Asm()
    a(f"""
.p2align 6
PH2:
s_cmp_ge_u32 s2, 256
s_cbranch_scc1 K2_END
""")
    stamp(a, 0)
    a(f"""
s_load_dwordx2 s[16:17], s[0:1], 64
s_load_dwordx2 s[4:5], s[0:1], 16
s_load_dwordx2 s[6:7], s[0:1], 40
s_and_b32 s36, s2, 7
s_lshr_b32 s37, s2, 3
s_and_b32 s20, s36, 1
s_and_b32 s38, s36, 6
s_and_b32 s39, s37, 1
s_add_u32 s21, s38, s39
s_lshr_b32 s22, s37, 1
v_lshrrev_b32 v2, 6, v0
v_and_b32 v1, 63, v0
v_and_b32 v13, 31, v1
v_readfirstlane_b32 s23, v2
v_lshrrev_b32 v14, 5, v1
v_lshrrev_b32 v8, 4, v1
v_and_b32 v9, 15, v1
v_lshlrev_b32 v10, 1, v8
v_xor_b32 v10, v9, v10
v_lshlrev_b32 v10, 4, v10
v_lshl_add_u32 v4, v8, 8, v10
v_xor_b32 v5, 0x80, v4
v_add_u32 v5, 0x400, v5
v_lshlrev_b32 v6, 3, v13
v_lshl_add_u32 v6, v14, 9, v6
s_waitcnt lgkmcnt(0)
s_mov_b32 s32, s16
s_and_b32 s33, s17, 0xffff
s_mov_b32 s34, {WS_BYTES}
s_mov_b32 s35, 0x20000
; s36 = ((b*64 + 8t)*336 + 7h)*256
s_lshl_b32 s36, s20, 6
s_lshl_b32 s37, s21, 3
s_add_u32 s36, s36, s37
s_mul_i32 s36, s36, {RT_STRIDE}
s_mul_i32 s37, s22, 1792
s_add_u32 s36, s36, s37
s_mul_i32 s37, s23, {2*RT_STRIDE}
s_add_u32 s38, s36, s37
s_sub_u32 s38, s38, {8*RT_STRIDE - 28672}
s_lshl_b32 s37, s23, 12
s_cmp_eq_u32 s21, 0
s_cselect_b32 s40, 1, 0
s_cmp_lt_u32 s23, 4
s_cselect_b32 s41, 1, 0
s_and_b32 s75, s40, s41
s_cmp_eq_u32 s75, 1
s_cbranch_scc1 K2_FILL
""")
    for u in range(2):
        for q in range(2):
            a(f"s_add_u32 m0, s37, {u*2048 + q*1024}")
            a(f"s_add_u32 s41, s38, {u*RT_STRIDE}")
            a(f"buffer_load_dwordx4 v{4+q}, s[32:35], s41 offen lds")
    a("s_branch K2_Q")
    a.label("K2_FILL")
    a("""
v_mov_b32 v8, 0
v_mov_b32 v9, 0
v_mov_b32 v10, 0
v_mov_b32 v11, 0
v_lshlrev_b32 v12, 4, v1
v_add_u32 v12, s37, v12
""")
    for q in range(4):
        a(f"ds_write_b128 v12, v[8:11] offset:{q*1024}")
        a(f"ds_write_b128 v12, v[8:11] offset:{32768 + q*1024}")
    a("s_waitcnt lgkmcnt(0)")
    a.label("K2_Q")
    a(f"""
s_mul_i32 s39, s23, {RT_STRIDE}
s_add_u32 s39, s39, s36
buffer_load_dwordx2 v[16:17], v6, s[32:35], s39 offen
buffer_load_dwordx2 v[18:19], v6, s[32:35], s39 offen offset:256
buffer_load_dwordx2 v[20:21], v6, s[32:35], s39 offen offset:1024
buffer_load_dwordx2 v[22:23], v6, s[32:35], s39 offen offset:1280
""")
    a("""
v_lshlrev_b32 v15, 2, v14
v_sub_u32 v15, v13, v15
""")
    for r in range(16):
        kr = (r & 3) + 8 * (r >> 2)
        a(f"v_cmp_le_i32 s[{40+2*r}:{41+2*r}], {kr}, v15")
    a(f"""
v_lshrrev_b32 v8, 1, v13
v_xor_b32 v8, 14, v8
v_lshlrev_b32 v8, 4, v8
v_and_b32 v9, 1, v13
v_lshl_add_u32 v8, v9, 3, v8
v_lshl_add_u32 v8, v14, 11, v8
v_add_u32 v8, s37, v8
s_cmp_eq_u32 s75, 1
s_cselect_b32 s36, 0x3f80, 0
v_mov_b32 v10, s36
v_mov_b32 v11, 0
v_mov_b32 v12, 0x3f80
""")
    KA = 56
    VA = 60
    a("s_lshl_b32 s36, s23, 11")
    a("""
v_lshrrev_b32 v2, 1, v13
v_and_b32 v3, 1, v13
v_lshlrev_b32 v3, 3, v3
v_add_u32 v3, s36, v3
""")
    for f in range(2):
        for z in range(2):
            a(f"""
v_lshl_add_u32 v7, v14, 1, {4*f+z}
v_lshlrev_b32 v9, 1, v7
v_and_b32 v9, 15, v9
v_xor_b32 v9, v9, v2
v_lshlrev_b32 v9, 4, v9
v_lshl_add_u32 v9, v7, 8, v9
v_add_u32 v{KA+2*f+z}, v9, v3
""")
    a("""
v_and_b32 v2, 15, v1
v_lshrrev_b32 v3, 4, v1
v_and_b32 v3, 1, v3
v_and_b32 v7, 3, v2
v_lshl_add_u32 v3, v3, 2, v7
v_lshrrev_b32 v2, 2, v2
v_lshl_add_u32 v2, v14, 2, v2
""")
    for f in range(2):
        for e in range(2):
            a(f"""
v_add_u32 v7, {16*f+8*e}, v2
v_lshrrev_b32 v9, 1, v7
v_lshlrev_b32 v15, 1, v3
v_xor_b32 v9, v9, v15
v_lshlrev_b32 v9, 4, v9
v_lshl_add_u32 v9, v3, 8, v9
v_and_b32 v7, 1, v7
v_lshl_add_u32 v9, v7, 3, v9
v_add_u32 v{VA+2*f+e}, s36, v9
""")
    CP = 64
    MP = 66
    T1, T2 = 68, 69
    a(f"v_mov_b32 v{CP}, {f32bits(CEXP)}")
    a(f"v_mov_b32 v{CP+1}, {f32bits(CEXP)}")
    a("""
s_waitcnt vmcnt(0)
ds_write_b64 v8, v[10:11] offset:1792
s_mov_b32 exec_lo, 0
v_mov_b32 v22, 0xdf80
v_mov_b32 v23, 0
s_mov_b64 exec, -1
s_waitcnt lgkmcnt(0)
s_barrier
s_cmp_eq_u32 s75, 1
s_cbranch_scc1 K2_NOV
""")
    for u in range(2):
        for q in range(2):
            a(f"s_add_u32 m0, s37, {32768 + u*2048 + q*1024}")
            a(f"s_add_u32 s77, s38, {u*RT_STRIDE + 28672}")
            a(f"buffer_load_dwordx4 v{4+q}, s[32:35], s77 offen lds")
    a.label("K2_NOV")
    stamp(a, 1)
    QF = 16
    O = 24
    KB = 72
    S = 96
    order = [0, 8, 1, 2, 3, 4, 5, 6, 7]

    def k_read(n):
        j = order[n]
        d = KB + 8 * (n % 3)
        for f in range(2):
            for z in range(2):
                a(f"ds_read_b64 v[{d+4*f+2*z}:{d+4*f+2*z+1}], v{KA+2*f+z} offset:{j*2048}")

    def v_read(n):
        j = n
        d = KB + 8 * (n % 3)
        for f in range(2):
            for e in range(2):
                a(f"ds_read_b64_tr_b16 v[{d+4*f+2*e}:{d+4*f+2*e+1}], v{VA+2*f+e} offset:{32768 + j*2048}")

    def maxes(j, first):
        s = S + 16 * j
        i = 0
        if first:
            a(f"v_max3_f32 v{T1}, v{s}, v{s+1}, v{s+2}")
            a(f"v_max_f32 v{T1}, v{T1}, v{s+3}")
            i = 4
        while i < 16:
            a(f"v_max3_f32 v{T1}, v{T1}, v{s+i}, v{s+i+1}")
            i += 2

    k_read(0)
    k_read(1)
    for n in range(9):
        if n + 2 < 9:
            k_read(n + 2)
        rem = min(9 - n - 1, 2)
        a(f"s_waitcnt lgkmcnt({4*rem})")
        j = order[n]
        d = KB + 8 * (n % 3)
        s = S + 16 * j
        a(f"v_mfma_f32_32x32x16_bf16 v[{s}:{s+15}], v[{d}:{d+3}], v[{QF}:{QF+3}], 0")
        a(f"v_mfma_f32_32x32x16_bf16 v[{s}:{s+15}], v[{d+4}:{d+7}], v[{QF+4}:{QF+7}], v[{s}:{s+15}]")
        if n == 3:
            for r in range(16):
                a(f"v_cndmask_b32 v{S+r}, v{S+r}, v{S+128+r}, s[{40+2*r}:{41+2*r}]")
        if n == 4:
            maxes(0, True)
        if n >= 4:
            maxes(order[n - 2], False)
    a("""
s_waitcnt vmcnt(0)
v_mov_b32 v13, 0
""")
    a("ds_write_b64 v8, v[12:13] offset:34560")
    maxes(order[7], False)
    a("s_waitcnt lgkmcnt(0)")
    a("s_barrier")
    maxes(order[8], False)
    stamp(a, 2)
    a(f"""
s_cmp_eq_u32 s20, 0
s_cselect_b32 s24, s4, s6
s_cselect_b32 s25, s5, s7
s_and_b32 s25, s25, 0xffff
s_mov_b32 s26, {WOBYTES}
s_mov_b32 s27, 0x20000
s_lshr_b32 s36, s2, 3
s_lshl_b32 s36, s36, 3
s_add_u32 s36, s36, s23
s_mul_i32 s36, s36, 1664
v_and_b32 v2, 15, v1
v_lshlrev_b32 v2, 7, v2
buffer_load_dword v48, v2, s[24:27], s36 offen
""")
    v_read(0)
    v_read(1)
    a(f"v_mov_b32 v{T2}, v{T1}")
    a(f"v_permlane32_swap_b32 v{T1}, v{T2}")
    a(f"v_max_f32 v{T1}, v{T1}, v{T2}")
    a(f"v_mul_f32 v{MP}, v{CP}, v{T1}")
    a(f"v_xor_b32 v{MP}, 0x80000000, v{MP}")
    a(f"v_mov_b32 v{MP+1}, v{MP}")

    def expo(j):
        s = S + 16 * j
        for r in range(0, 16, 2):
            a(f"v_pk_fma_f32 v[{s+r}:{s+r+1}], v[{s+r}:{s+r+1}], v[{CP}:{CP+1}], v[{MP}:{MP+1}]")
        for r in range(16):
            a(f"v_exp_f32 v{s+r}, v{s+r}")

    expo(0)
    for r in range(16):
        a(f"v_cndmask_b32 v{S+128+r}, 0, v{S+r}, s[{40+2*r}:{41+2*r}]")
    for r in range(16):
        a(f"v_sub_f32 v{S+r}, v{S+r}, v{S+128+r}")
    pack(a, S, S)
    pack(a, S + 128, S + 128)
    for n in range(9):
        j = n
        s = S + 16 * j
        if n + 2 < 9:
            v_read(n + 2)
        rem = min(9 - n - 1, 2)
        a(f"s_waitcnt lgkmcnt({4*rem})")
        d = KB + 8 * (n % 3)
        cc = "0" if n == 0 else f"v[{O}:{O+15}]"
        a(f"v_mfma_f32_32x32x16_bf16 v[{O}:{O+15}], v[{d}:{d+3}], v[{s}:{s+3}], {cc}")
        a(f"v_mfma_f32_32x32x16_bf16 v[{O}:{O+15}], v[{d+4}:{d+7}], v[{s+4}:{s+7}], v[{O}:{O+15}]")
        if j + 1 <= 7:
            expo(j + 1)
            pack(a, S + 16 * (j + 1), S + 16 * (j + 1))
    stamp(a, 3)
    a(f"""
v_and_b32 v13, 31, v1
s_mul_i32 s37, s22, 7
v_add_u32 v2, s37, v14
v_lshlrev_b32 v3, 4, v13
s_lshl_b32 s36, s20, 6
s_lshl_b32 s37, s21, 3
s_add_u32 s36, s36, s37
s_add_u32 s36, s36, s23
s_mul_i32 s36, s36, {O_RT}
s_add_u32 s36, s36, {O_OFF}
v_lshrrev_b32 v4, 1, v2
v_and_b32 v5, 1, v2
v_lshl_add_u32 v4, v4, 9, v3
v_lshl_add_u32 v4, v5, 3, v4
""")
    a(f"v_mov_b32 v{T1}, v{O+12}")
    a(f"v_mov_b32 v{T2}, v{O+12}")
    a(f"v_permlane32_swap_b32 v{T1}, v{T2}")
    a(f"v_rcp_f32 v{T2}, v{T2}")
    for r in range(16):
        a(f"v_mul_f32 v{O+r}, v{O+r}, v{T2}")
    pack(a, O, O)
    for rg in range(4):
        if rg == 3:
            a("s_mov_b32 exec_hi, 0")
        a(f"buffer_store_dwordx2 v[{O+2*rg}:{O+2*rg+1}], v4, s[32:35], s36 offen offset:{rg*512} {OSC}")
    a("s_mov_b64 exec, -1")
    stamp_out(a, 5, 1)
    a.label("K2_END")
    a("s_endpgm")
    return a.finish()


K3_LDS = 448 * 128


def k3():
    a = Asm()
    a(f"""
.p2align 6
PH3:
s_cmp_ge_u32 s2, 224
s_cbranch_scc1 K3_END
""")
    stamp(a, 0)
    a(f"""
s_load_dwordx2 s[4:5], s[0:1], 16
s_load_dwordx2 s[6:7], s[0:1], 40
s_load_dwordx2 s[8:9], s[0:1], 48
s_load_dwordx2 s[10:11], s[0:1], 64
s_and_b32 s36, s2, 7
s_lshr_b32 s37, s2, 3
s_and_b32 s20, s36, 1
s_lshr_b32 s38, s36, 1
s_lshl_b32 s38, s38, 2
s_and_b32 s39, s37, 3
s_add_u32 s21, s38, s39
s_lshr_b32 s22, s37, 2
v_lshrrev_b32 v2, 6, v0
v_and_b32 v1, 63, v0
v_lshrrev_b32 v8, 3, v1
v_readfirstlane_b32 s23, v2
s_cmp_lt_u32 s23, 4
s_cbranch_scc1 K3_COMPUTE
s_sub_u32 s76, s23, 4
v_and_b32 v9, 7, v1
v_lshrrev_b32 v10, 4, v1
v_and_b32 v10, 1, v10
v_lshlrev_b32 v10, 2, v10
v_xor_b32 v9, v9, v10
v_mul_u32_u24 v8, 896, v8
v_lshlrev_b32 v9, 4, v9
v_add_u32 v2, v8, v9
s_mul_i32 s36, s76, 14336
s_lshl_b32 s37, s22, 7
s_add_u32 s36, s36, s37
s_lshl_b32 s37, s76, 11
s_waitcnt lgkmcnt(0)
s_cmp_eq_u32 s20, 0
s_cselect_b32 s24, s4, s6
s_cselect_b32 s25, s5, s7
s_and_b32 s25, s25, 0xffff
s_mov_b32 s26, {WOBYTES}
s_mov_b32 s27, 0x20000
""")
    for blk in range(7):
        for q in range(2):
            a(f"s_add_u32 s38, s36, {(blk*64 + 8*q)*896}")
            a(f"s_add_u32 m0, s37, {(blk*64 + 8*q)*128}")
            a("buffer_load_dwordx4 v2, s[24:27], s38 offen lds")
    for blk in range(7):
        a(f"s_waitcnt vmcnt({2*(6-blk)})")
        a("s_barrier")
    a("s_endpgm")
    a.label("K3_COMPUTE")
    a(f"""
v_lshlrev_b32 v3, 4, v1
s_lshl_b32 s39, s20, 6
s_lshl_b32 s38, s21, 2
s_add_u32 s39, s39, s38
s_add_u32 s39, s39, s23
s_mul_i32 s39, s39, {O_RT}
s_add_u32 s39, s39, {O_OFF}
s_waitcnt lgkmcnt(0)
s_mov_b32 s32, s10
s_and_b32 s33, s11, 0xffff
s_mov_b32 s34, {WS_BYTES}
s_mov_b32 s35, 0x20000
""")
    BF = 64

    def o_loads(blk):
        for k in range(4):
            st = blk * 4 + k
            d = BF + 4 * st
            a(f"buffer_load_dwordx4 v[{d}:{d+3}], v3, s[32:35], s39 offen offset:{k*1024}")
        a("s_add_u32 s39, s39, 4096")

    PRE = 3
    for blk in range(PRE):
        o_loads(blk)
    a(f"""
s_mov_b32 s28, s8
s_and_b32 s29, s9, 0xffff
s_mov_b32 s30, {OUTBYTES}
s_mov_b32 s31, 0x20000
v_lshrrev_b32 v10, 5, v1
v_lshlrev_b32 v10, 3, v10
v_and_b32 v11, 15, v1
v_lshrrev_b32 v12, 2, v11
v_add_u32 v10, v10, v12
v_lshlrev_b32 v10, 7, v10
v_lshrrev_b32 v12, 3, v11
v_lshlrev_b32 v12, 2, v12
v_lshrrev_b32 v13, 4, v1
v_and_b32 v13, 1, v13
v_lshlrev_b32 v13, 1, v13
v_add_u32 v12, v12, v13
v_and_b32 v13, 3, v11
v_lshrrev_b32 v14, 1, v13
v_add_u32 v12, v12, v14
v_lshlrev_b32 v12, 4, v12
v_and_b32 v13, 1, v13
v_lshlrev_b32 v13, 3, v13
v_add3_u32 v8, v10, v12, v13
v_xor_b32 v9, 64, v8
v_and_b32 v10, 31, v1
v_lshrrev_b32 v11, 5, v1
v_mul_u32_u24 v10, 1792, v10
v_lshlrev_b32 v11, 4, v11
v_add_u32 v10, v10, v11
s_lshl_b32 s36, s21, 7
s_lshl_b32 s37, s23, 5
s_add_u32 s36, s36, s37
s_mul_i32 s36, s36, 1792
s_mul_i32 s37, s20, 896
s_add_u32 s36, s36, s37
s_lshl_b32 s37, s22, 7
s_add_u32 s36, s36, s37
""")
    ACC = (16, 32)
    AF = (48, 56)

    def a_reads(st):
        for nt2 in range(2):
            d = AF[st & 1] + 4 * nt2
            for e in range(2):
                a(f"ds_read_b64_tr_b16 v[{d+2*e}:{d+2*e+1}], v{8+nt2} offset:{(16*st + 4*e)*128}")

    for st in range(28):
        blk, k = st >> 2, st & 3
        if k == 0:
            a("s_barrier")
            if blk == 0:
                stamp(a, 1)
            a_reads(st)
            if blk + PRE <= 6:
                o_loads(blk + PRE)
            outstanding = min(6 - blk, PRE) * 4
            a(f"s_waitcnt vmcnt({outstanding})")
        n = 0
        if k < 3:
            a_reads(st + 1)
            n = 4
        a(f"s_waitcnt lgkmcnt({n})")
        for nt2 in range(2):
            acc = ACC[nt2]
            cc = "0" if st == 0 else f"v[{acc}:{acc+15}]"
            d = AF[st & 1] + 4 * nt2
            bfr = BF + 4 * st
            a(f"v_mfma_f32_32x32x16_bf16 v[{acc}:{acc+15}], v[{d}:{d+3}], v[{bfr}:{bfr+3}], {cc}")
    stamp(a, 2)
    for nt2 in range(2):
        acc = ACC[nt2]
        pack(a, acc, acc)
        for p in range(2):
            b = acc + 4 * p
            a(f"v_permlane32_swap_b32 v{b}, v{b+2}")
            a(f"v_permlane32_swap_b32 v{b+1}, v{b+3}")
            a(f"buffer_store_dwordx4 v[{b}:{b+3}], v10, s[28:31], s36 offen offset:{nt2*64 + p*32} {OUTSC}")
    stamp_out(a, 4, 2)
    a.label("K3_END")
    a("s_endpgm")
    return a.finish()


def desc(name, vgpr, sgpr):
    acc = (vgpr + 3) // 4 * 4
    return f""".amdhsa_kernel {name}
  .amdhsa_next_free_vgpr {vgpr}
  .amdhsa_next_free_sgpr {sgpr}
  .amdhsa_accum_offset {acc}
  .amdhsa_group_segment_fixed_size 0
  .amdhsa_kernarg_size 72
  .amdhsa_user_sgpr_count 2
  .amdhsa_user_sgpr_kernarg_segment_ptr 1
  .amdhsa_system_sgpr_workgroup_id_x 1
.end_amdhsa_kernel
"""


def main():
    out = HEADER
    out += f"; @launch kernel={KN} grid=(232,1,1) block=(512,1,1) lds={K1_LDS}\n"
    out += f"; @launch kernel={KN} grid=(256,1,1) block=(512,1,1) lds={K2_LDS}\n"
    out += f"; @launch kernel={KN} grid=(224,1,1) block=(512,1,1) lds={K3_LDS}\n"
    out += '.amdgcn_target "amdgcn-amd-amdhsa--gfx950"\n.text\n'
    out += k1()
    out += k2()
    out += k3()
    out += "CODE_END:\n"
    out += '.section .rodata,"a"\n.p2align 6\n'
    out += desc(KN, 240, 102)
    args = [x for x in sys.argv[1:] if not x.startswith("--")]
    path = args[0] if args else f"cdna_kernels/{NAME}.s"
    open(path, "w").write(out)


main()
```

```python
import sys, struct, math
sys.path.insert(0, "dev")
from asmlib import Asm

NAME = "concat_heads__sliding_block__sliding_block__prompt"
HEADER = open(f"cdna_kernels/{NAME}.s.ref").read().split("; Override launch geometry")[0]
STAMPS = "--stamp" in sys.argv
TOUCH = False
PRO = 1 if "--p1" in sys.argv else 2
STMOD = [x[5:].replace("_", " ") for x in sys.argv if x.startswith("--st=")]
STMOD = STMOD[0] if STMOD else "sc1"
OSC = "sc1" if "--osc1" in sys.argv else ""
OUTSC = "sc1" if "--outsc1" in sys.argv else ("nt" if "--outnt" in sys.argv else "")
TI = [int(x[5:]) for x in sys.argv if x.startswith("--ti=")]
TI = TI[0] if TI else 4
RR = [int(x[4:]) for x in sys.argv if x.startswith("--r=")]
RR = RR[0] if RR else 3
if RR == 1:
    ROT = "s_mov_b32 s74, 0"
elif RR == 2:
    ROT = "s_add_u32 s39, s39, s22\ns_and_b32 s39, s39, 1\ns_mul_i32 s74, s39, 3"
elif RR == 3:
    ROT = "s_add_u32 s39, s39, s22\ns_mul_i32 s38, s39, 86\ns_lshr_b32 s38, s38, 8\ns_mul_i32 s38, s38, 3\ns_sub_u32 s39, s39, s38\ns_lshl_b32 s74, s39, 1"
elif RR == 4:
    ROT = "s_add_u32 s39, s39, s22\ns_and_b32 s39, s39, 3\ns_mul_i32 s74, s39, 7\ns_lshr_b32 s74, s74, 2"
else:
    ROT = "s_lshl_b32 s39, s39, 1\ns_add_u32 s39, s39, s22\ns_cmp_ge_u32 s39, 7\ns_cselect_b32 s38, 7, 0\ns_sub_u32 s74, s39, s38"


KN = "fused_kernel"


def ldsu(n):
    return (n + 1279) // 1280 * 5


def f32bits(x):
    return struct.unpack("<I", struct.pack("<f", x))[0]


XBYTES = 2048 * 896
WBYTES = 448 * 2688
WOBYTES = 448 * 896
OUTBYTES = 2048 * 1792
RT_STRIDE = 336 * 256
QKV_BYTES = 2 * 64 * RT_STRIDE
O_OFF = QKV_BYTES + 4096
O_RT = 56 * 512
WS_BYTES = O_OFF + 2 * 64 * O_RT
STAMP_OFF = 32 << 20
CEXP = (28 ** -0.5) * math.log2(math.e)


def stamp(a, i):
    if STAMPS:
        a("s_waitcnt lgkmcnt(0)")
        a(f"s_memtime s[{80+2*i}:{81+2*i}]")
        a("s_waitcnt lgkmcnt(0)")


def stamp_out(a, n, kidx, last=None):
    if STAMPS:
        a("s_waitcnt vmcnt(0)")
        stamp(a, n - 1 if last is None else last)
        a("s_mov_b32 s34, 0x4000000")
        a("s_lshl_b32 s36, s2, 3")
        a("s_add_u32 s36, s36, s23")
        a("s_lshl_b32 s36, s36, 6")
        a(f"s_add_u32 s36, s36, {STAMP_OFF + kidx * (1 << 20)}")
        a("v_mov_b32 v3, 0")
        a("s_mov_b64 exec, 1")
        for i in range(n):
            a(f"v_mov_b32 v4, s{80+2*i}")
            a(f"buffer_store_dword v4, v3, s[32:35], s36 offen offset:{4*i}")
            a("s_nop 1")


def pack(a, src, dst):
    for i in range(8):
        a(f"v_cvt_pk_bf16_f32 v{dst+i}, v{src+2*i}, v{src+2*i+1}")


K1_STAGE = 40960
K1_LDS = 4 * K1_STAGE
K1_WOFF = 16384


def k1():
    a = Asm()
    a(f"""
.globl {KN}
.p2align 8
.type {KN},@function
{KN}:
s_getreg_b32 s3, hwreg(HW_REG_LDS_ALLOC, 12, 10)
s_cmp_lt_u32 s3, 244
s_cbranch_scc1 PH3
s_cmp_lt_u32 s3, 400
s_cbranch_scc1 PH2
s_cmp_ge_u32 s2, 224
s_cbranch_scc1 K1_HELP
""")
    stamp(a, 0)
    a(f"""
s_load_dwordx8 s[4:11], s[0:1], 0
s_load_dwordx4 s[12:15], s[0:1], 32
s_load_dwordx2 s[16:17], s[0:1], 64
s_and_b32 s36, s2, 7
s_lshr_b32 s37, s2, 3
s_and_b32 s20, s36, 1
s_lshr_b32 s38, s36, 1
s_lshl_b32 s38, s38, 2
s_and_b32 s39, s37, 3
s_add_u32 s21, s38, s39
s_lshr_b32 s22, s37, 2
{ROT}
v_lshrrev_b32 v2, 6, v0
v_and_b32 v1, 63, v0
s_nop 0
v_readfirstlane_b32 s23, v2
s_cmp_lt_u32 s23, 4
s_cbranch_scc1 K1_COMPUTE
s_sub_u32 s76, s23, 4
""")
    for ip, vd in enumerate(("v2", "v3", "v4")):
        a(f"""
v_add_u32 v8, {64*ip}, v1
v_mul_u32_u24 v9, 2731, v8
v_lshrrev_b32 v9, 16, v9
v_mul_u32_u24 v10, 24, v9
v_sub_u32 v10, v8, v10
v_lshrrev_b32 v11, 1, v9
v_and_b32 v11, 1, v11
v_lshlrev_b32 v11, 2, v11
v_xor_b32 v10, v10, v11
v_mul_u32_u24 v9, 2688, v9
v_lshlrev_b32 v10, 4, v10
v_add_u32 {vd}, v9, v10
""")
    a("""
v_lshrrev_b32 v8, 3, v1
v_and_b32 v9, 7, v1
v_lshrrev_b32 v10, 4, v1
v_xor_b32 v11, v9, v10
v_mul_u32_u24 v8, 896, v8
v_lshlrev_b32 v12, 4, v11
v_add_u32 v5, v8, v12
v_xor_b32 v11, 4, v11
v_lshlrev_b32 v12, 4, v11
v_add_u32 v6, v8, v12
s_lshl_b32 s36, s21, 7
s_lshl_b32 s37, s76, 5
s_add_u32 s36, s36, s37
s_mul_i32 s70, s36, 896
s_mul_i32 s36, s76, 43008
s_mul_i32 s37, s22, 384
s_add_u32 s71, s36, s37
s_lshl_b32 s72, s76, 12
s_mul_i32 s73, s76, 6144
s_waitcnt lgkmcnt(0)
""")
    a(f"""
s_add_u32 s73, s73, {K1_WOFF}
s_cmp_eq_u32 s20, 0
s_cselect_b32 s24, s4, s10
s_cselect_b32 s25, s5, s11
s_cselect_b32 s28, s6, s12
s_cselect_b32 s29, s7, s13
s_and_b32 s25, s25, 0xffff
s_and_b32 s29, s29, 0xffff
s_mov_b32 s26, {XBYTES}
s_mov_b32 s27, 0x20000
s_mov_b32 s30, {WBYTES}
s_mov_b32 s31, 0x20000
""")

    def dma(i):
        st = (i % 4) * K1_STAGE
        a("s_lshl_b32 s36, s74, 7\ns_add_u32 s36, s36, s70\ns_mul_i32 s37, s74, 172032\ns_add_u32 s37, s37, s71\n"
          "s_add_u32 s74, s74, 1\ns_cmp_eq_u32 s74, 7\ns_cselect_b32 s74, 0, s74")
        for q in range(6):
            a(f"s_add_u32 s38, s37, {(q//3)*8*2688}\ns_add_u32 m0, s73, {st + q*1024}\n"
              f"buffer_load_dwordx4 v{2+q%3}, s[28:31], s38 offen lds")
        for q in range(4):
            a(f"s_add_u32 s38, s36, {q*7168}\ns_add_u32 m0, s72, {st + q*1024}\n"
              f"buffer_load_dwordx4 v{5+(q&1)}, s[24:27], s38 offen lds")

    if PRO == 2:
        dma(0)
        dma(1)
        for i in range(7):
            a(f"s_waitcnt vmcnt({10 if i < 6 else 0})")
            a("s_barrier")
            if i + 2 <= 6:
                dma(i + 2)
    else:
        dma(0)
        a("s_waitcnt vmcnt(0)")
        a("s_barrier")
        dma(1)
        dma(2)
        for i in range(1, 7):
            a(f"s_waitcnt vmcnt({10 if i < 6 else 0})")
            a("s_barrier")
            if i + 2 <= 6:
                dma(i + 2)
    a("s_endpgm")
    a.label("K1_COMPUTE")
    a(f"""
s_and_b32 s36, s23, 1
s_lshl_b32 s36, s36, 13
v_and_b32 v12, 31, v1
v_lshrrev_b32 v13, 5, v1
v_lshrrev_b32 v14, 1, v12
v_and_b32 v14, 7, v14
v_xor_b32 v14, v14, v13
v_lshlrev_b32 v14, 4, v14
v_lshlrev_b32 v15, 7, v12
v_add3_u32 v7, v15, v14, s36
v_xor_b32 v8, 32, v7
v_xor_b32 v9, 64, v7
v_xor_b32 v10, 96, v7
""")
    a(f"""
s_lshr_b32 s36, s23, 1
s_mul_i32 s36, s36, 3
v_lshrrev_b32 v13, 5, v1
v_lshlrev_b32 v13, 3, v13
v_and_b32 v14, 15, v1
v_lshrrev_b32 v15, 2, v14
v_add_u32 v13, v13, v15
v_mul_u32_u24 v13, 384, v13
v_lshrrev_b32 v15, 4, v1
v_and_b32 v15, 1, v15
v_lshlrev_b32 v15, 5, v15
v_and_b32 v12, 3, v14
v_lshlrev_b32 v12, 3, v12
v_add3_u32 v13, v13, v15, v12
v_add_u32 v13, {K1_WOFF}, v13
v_lshrrev_b32 v14, 3, v14
""")
    WA, XA = 160, 172
    for m in range(3):
        a(f"""
s_add_u32 s37, s36, {m}
v_xor_b32 v12, s37, v14
v_lshlrev_b32 v12, 6, v12
v_add_u32 v11, v13, v12
""")
        for s4 in range(4):
            a(f"v_add_u32 v{WA+3*s4+m}, {s4*K1_STAGE}, v11")
    for s4 in range(4):
        for ks in range(4):
            a(f"v_add_u32 v{XA+4*s4+ks}, {s4*K1_STAGE}, v{7+ks}")
    a(f"""
s_waitcnt lgkmcnt(0)
s_mov_b32 s32, s16
s_and_b32 s33, s17, 0xffff
s_mov_b32 s34, {WS_BYTES}
s_mov_b32 s35, 0x20000
v_lshlrev_b32 v2, 3, v1
s_lshl_b32 s36, s20, 6
s_lshl_b32 s37, s21, 2
s_add_u32 s36, s36, s37
s_and_b32 s37, s23, 1
s_lshl_b32 s37, s37, 1
s_add_u32 s36, s36, s37
s_mul_i32 s36, s36, {RT_STRIDE}
s_lshr_b32 s37, s23, 1
s_mul_i32 s37, s37, 3
s_mul_i32 s38, s22, 6
s_add_u32 s37, s37, s38
s_lshl_b32 s37, s37, 11
s_add_u32 s36, s36, s37
""")
    ACC = 16
    XF = (112, 120)
    WF = (128, 140)

    def read_list(step):
        i, ks = step >> 2, step & 3
        s4 = i % 4
        L = []
        d = XF[step & 1]
        L.append(f"ds_read_b128 v[{d}:{d+3}], v{XA+4*s4+ks}")
        for m in range(3):
            dw = WF[step & 1] + 4 * m
            L.append(f"ds_read_b64_tr_b16 v[{dw}:{dw+1}], v{WA+3*s4+m} offset:{(16*ks)*384}")
            L.append(f"ds_read_b64_tr_b16 v[{dw+2}:{dw+3}], v{WA+3*s4+m} offset:{(16*ks+4)*384}")
        L.append(f"ds_read_b128 v[{d+4}:{d+7}], v{XA+4*s4+ks} offset:4096")
        return L

    a("s_barrier")
    stamp(a, 1)
    for r in read_list(0):
        a(r)
    for step in range(28):
        i, ks = step >> 2, step & 3
        fill = []
        if ks == 2 and i + 1 <= 6:
            a("s_barrier")
        if step + 1 < 28:
            fill = read_list(step + 1)
        a("s_waitcnt lgkmcnt(0)")
        order = [(0, 0), (0, 1), (0, 2), (1, 0), (1, 1), (1, 2)]
        for n, (aa, m) in enumerate(order):
            acc = ACC + (aa * 3 + m) * 16
            cc = "0" if step == 0 else f"v[{acc}:{acc+15}]"
            wf = WF[step & 1] + 4 * m
            xf = XF[step & 1] + 4 * aa
            a(f"v_mfma_f32_32x32x16_bf16 v[{acc}:{acc+15}], v[{wf}:{wf+3}], v[{xf}:{xf+3}], {cc}")
            for _ in range(2):
                if fill:
                    a(fill.pop(0))
        for x in fill:
            a(x)
    stamp(a, 2)
    for aa in range(2):
        if aa:
            a(f"s_add_u32 s36, s36, {RT_STRIDE}")
        for m in range(3):
            acc = ACC + (aa * 3 + m) * 16
            pack(a, acc, acc)
            a(f"s_add_u32 s37, s36, {m*2048}")
            for rg in range(4):
                a(f"buffer_store_dwordx2 v[{acc+2*rg}:{acc+2*rg+1}], v2, s[32:35], s37 offen offset:{rg*512} {STMOD}")
    stamp_out(a, 4, 0)
    a.label("K1_END")
    a("s_endpgm")
    a.label("K1_HELP")
    a(f"""
s_cmp_ge_u32 s2, 232
s_cbranch_scc1 K1_END
s_getpc_b64 s[4:5]
K1_PC:
s_sub_u32 s4, s4, K1_PC-{KN}
s_subb_u32 s5, s5, 0
v_lshlrev_b32 v1, 7, v0
s_mov_b32 s6, CODE_END-{KN}-4
v_min_u32 v1, s6, v1
global_load_dword v2, v1, s[4:5]
s_endpgm
""")
    return a.finish()


K2_LDS = 65536
K2_LDSU = ldsu(65536)
K3_LDSU = ldsu(448 * 128)


def k2():
    a = Asm()
    a(f"""
.p2align 6
PH2:
s_cmp_ge_u32 s2, 256
s_cbranch_scc1 K2_END
""")
    stamp(a, 0)
    a(f"""
s_load_dwordx2 s[16:17], s[0:1], 64
s_load_dwordx2 s[4:5], s[0:1], 16
s_load_dwordx2 s[6:7], s[0:1], 40
s_and_b32 s36, s2, 7
s_lshr_b32 s37, s2, 3
s_and_b32 s20, s36, 1
s_and_b32 s38, s36, 6
s_and_b32 s39, s37, 1
s_add_u32 s21, s38, s39
s_lshr_b32 s22, s37, 1
v_lshrrev_b32 v2, 6, v0
v_and_b32 v1, 63, v0
v_and_b32 v13, 31, v1
v_readfirstlane_b32 s23, v2
v_lshrrev_b32 v14, 5, v1
v_lshrrev_b32 v8, 4, v1
v_and_b32 v9, 15, v1
v_lshlrev_b32 v10, 1, v8
v_xor_b32 v10, v9, v10
v_lshlrev_b32 v10, 4, v10
v_lshl_add_u32 v4, v8, 8, v10
v_xor_b32 v5, 0x80, v4
v_add_u32 v5, 0x400, v5
v_lshlrev_b32 v6, 3, v13
v_lshl_add_u32 v6, v14, 9, v6
s_waitcnt lgkmcnt(0)
s_mov_b32 s32, s16
s_and_b32 s33, s17, 0xffff
s_mov_b32 s34, {WS_BYTES}
s_mov_b32 s35, 0x20000
; s36 = ((b*64 + 8t)*336 + 7h)*256
s_lshl_b32 s36, s20, 6
s_lshl_b32 s37, s21, 3
s_add_u32 s36, s36, s37
s_mul_i32 s36, s36, {RT_STRIDE}
s_mul_i32 s37, s22, 1792
s_add_u32 s36, s36, s37
s_mul_i32 s37, s23, {2*RT_STRIDE}
s_add_u32 s38, s36, s37
s_sub_u32 s38, s38, {8*RT_STRIDE - 28672}
s_lshl_b32 s37, s23, 12
s_cmp_eq_u32 s21, 0
s_cselect_b32 s40, 1, 0
s_cmp_lt_u32 s23, 4
s_cselect_b32 s41, 1, 0
s_and_b32 s75, s40, s41
s_cmp_eq_u32 s75, 1
s_cbranch_scc1 K2_FILL
""")
    for u in range(2):
        for q in range(2):
            a(f"s_add_u32 m0, s37, {u*2048 + q*1024}")
            a(f"s_add_u32 s41, s38, {u*RT_STRIDE}")
            a(f"buffer_load_dwordx4 v{4+q}, s[32:35], s41 offen lds")
    a("s_branch K2_Q")
    a.label("K2_FILL")
    a("""
v_mov_b32 v8, 0
v_mov_b32 v9, 0
v_mov_b32 v10, 0
v_mov_b32 v11, 0
v_lshlrev_b32 v12, 4, v1
v_add_u32 v12, s37, v12
""")
    for q in range(4):
        a(f"ds_write_b128 v12, v[8:11] offset:{q*1024}")
        a(f"ds_write_b128 v12, v[8:11] offset:{32768 + q*1024}")
    a("s_waitcnt lgkmcnt(0)")
    a.label("K2_Q")
    a(f"""
s_mul_i32 s39, s23, {RT_STRIDE}
s_add_u32 s39, s39, s36
buffer_load_dwordx2 v[16:17], v6, s[32:35], s39 offen
buffer_load_dwordx2 v[18:19], v6, s[32:35], s39 offen offset:256
buffer_load_dwordx2 v[20:21], v6, s[32:35], s39 offen offset:1024
buffer_load_dwordx2 v[22:23], v6, s[32:35], s39 offen offset:1280
""")
    a("""
v_lshlrev_b32 v15, 2, v14
v_sub_u32 v15, v13, v15
""")
    for r in range(16):
        kr = (r & 3) + 8 * (r >> 2)
        a(f"v_cmp_le_i32 s[{40+2*r}:{41+2*r}], {kr}, v15")
    a(f"""
v_lshrrev_b32 v8, 1, v13
v_xor_b32 v8, 14, v8
v_lshlrev_b32 v8, 4, v8
v_and_b32 v9, 1, v13
v_lshl_add_u32 v8, v9, 3, v8
v_lshl_add_u32 v8, v14, 11, v8
v_add_u32 v8, s37, v8
s_cmp_eq_u32 s75, 1
s_cselect_b32 s36, 0x3f80, 0
v_mov_b32 v10, s36
v_mov_b32 v11, 0
v_mov_b32 v12, 0x3f80
""")
    KA = 56
    VA = 60
    a("s_lshl_b32 s36, s23, 11")
    a("""
v_lshrrev_b32 v2, 1, v13
v_and_b32 v3, 1, v13
v_lshlrev_b32 v3, 3, v3
v_add_u32 v3, s36, v3
""")
    for f in range(2):
        for z in range(2):
            a(f"""
v_lshl_add_u32 v7, v14, 1, {4*f+z}
v_lshlrev_b32 v9, 1, v7
v_and_b32 v9, 15, v9
v_xor_b32 v9, v9, v2
v_lshlrev_b32 v9, 4, v9
v_lshl_add_u32 v9, v7, 8, v9
v_add_u32 v{KA+2*f+z}, v9, v3
""")
    a("""
v_and_b32 v2, 15, v1
v_lshrrev_b32 v3, 4, v1
v_and_b32 v3, 1, v3
v_and_b32 v7, 3, v2
v_lshl_add_u32 v3, v3, 2, v7
v_lshrrev_b32 v2, 2, v2
v_lshl_add_u32 v2, v14, 2, v2
""")
    for f in range(2):
        for e in range(2):
            a(f"""
v_add_u32 v7, {16*f+8*e}, v2
v_lshrrev_b32 v9, 1, v7
v_lshlrev_b32 v15, 1, v3
v_xor_b32 v9, v9, v15
v_lshlrev_b32 v9, 4, v9
v_lshl_add_u32 v9, v3, 8, v9
v_and_b32 v7, 1, v7
v_lshl_add_u32 v9, v7, 3, v9
v_add_u32 v{VA+2*f+e}, s36, v9
""")
    CP = 64
    MP = 66
    T1, T2 = 68, 69
    a(f"v_mov_b32 v{CP}, {f32bits(CEXP)}")
    a(f"v_mov_b32 v{CP+1}, {f32bits(CEXP)}")
    a("""
s_waitcnt vmcnt(0)
ds_write_b64 v8, v[10:11] offset:1792
s_mov_b32 exec_lo, 0
v_mov_b32 v22, 0xdf80
v_mov_b32 v23, 0
s_mov_b64 exec, -1
s_waitcnt lgkmcnt(0)
s_barrier
s_cmp_eq_u32 s75, 1
s_cbranch_scc1 K2_NOV
""")
    for u in range(2):
        for q in range(2):
            a(f"s_add_u32 m0, s37, {32768 + u*2048 + q*1024}")
            a(f"s_add_u32 s77, s38, {u*RT_STRIDE + 28672}")
            a(f"buffer_load_dwordx4 v{4+q}, s[32:35], s77 offen lds")
    a.label("K2_NOV")
    stamp(a, 1)
    QF = 16
    O = 24
    KB = 72
    S = 96
    order = [0, 8, 1, 2, 3, 4, 5, 6, 7]

    def k_read(n):
        j = order[n]
        d = KB + 8 * (n % 3)
        for f in range(2):
            for z in range(2):
                a(f"ds_read_b64 v[{d+4*f+2*z}:{d+4*f+2*z+1}], v{KA+2*f+z} offset:{j*2048}")

    def v_read(n):
        j = n
        d = KB + 8 * (n % 3)
        for f in range(2):
            for e in range(2):
                a(f"ds_read_b64_tr_b16 v[{d+4*f+2*e}:{d+4*f+2*e+1}], v{VA+2*f+e} offset:{32768 + j*2048}")

    def maxes(j, first):
        s = S + 16 * j
        i = 0
        if first:
            a(f"v_max3_f32 v{T1}, v{s}, v{s+1}, v{s+2}")
            a(f"v_max_f32 v{T1}, v{T1}, v{s+3}")
            i = 4
        while i < 16:
            a(f"v_max3_f32 v{T1}, v{T1}, v{s+i}, v{s+i+1}")
            i += 2

    k_read(0)
    k_read(1)
    for n in range(9):
        if n + 2 < 9:
            k_read(n + 2)
        rem = min(9 - n - 1, 2)
        a(f"s_waitcnt lgkmcnt({4*rem})")
        j = order[n]
        d = KB + 8 * (n % 3)
        s = S + 16 * j
        a(f"v_mfma_f32_32x32x16_bf16 v[{s}:{s+15}], v[{d}:{d+3}], v[{QF}:{QF+3}], 0")
        a(f"v_mfma_f32_32x32x16_bf16 v[{s}:{s+15}], v[{d+4}:{d+7}], v[{QF+4}:{QF+7}], v[{s}:{s+15}]")
        if n == 3:
            for r in range(16):
                a(f"v_cndmask_b32 v{S+r}, v{S+r}, v{S+128+r}, s[{40+2*r}:{41+2*r}]")
        if n == 4:
            maxes(0, True)
        if n >= 4:
            maxes(order[n - 2], False)
    a("""
s_waitcnt vmcnt(0)
v_mov_b32 v13, 0
""")
    a("ds_write_b64 v8, v[12:13] offset:34560")
    maxes(order[7], False)
    a("s_waitcnt lgkmcnt(0)")
    a("s_barrier")
    maxes(order[8], False)
    stamp(a, 2)
    a(f"""
s_cmp_eq_u32 s20, 0
s_cselect_b32 s24, s4, s6
s_cselect_b32 s25, s5, s7
s_and_b32 s25, s25, 0xffff
s_mov_b32 s26, {WOBYTES}
s_mov_b32 s27, 0x20000
s_lshr_b32 s36, s2, 3
s_lshl_b32 s36, s36, 3
s_add_u32 s36, s36, s23
s_mul_i32 s36, s36, 1664
v_and_b32 v2, 15, v1
v_lshlrev_b32 v2, 7, v2
buffer_load_dword v48, v2, s[24:27], s36 offen
""")
    v_read(0)
    v_read(1)
    a(f"v_mov_b32 v{T2}, v{T1}")
    a(f"v_permlane32_swap_b32 v{T1}, v{T2}")
    a(f"v_max_f32 v{T1}, v{T1}, v{T2}")
    a(f"v_mul_f32 v{MP}, v{CP}, v{T1}")
    a(f"v_xor_b32 v{MP}, 0x80000000, v{MP}")
    a(f"v_mov_b32 v{MP+1}, v{MP}")

    def expo(j):
        s = S + 16 * j
        for r in range(0, 16, 2):
            a(f"v_pk_fma_f32 v[{s+r}:{s+r+1}], v[{s+r}:{s+r+1}], v[{CP}:{CP+1}], v[{MP}:{MP+1}]")
        for r in range(16):
            a(f"v_exp_f32 v{s+r}, v{s+r}")

    expo(0)
    for r in range(16):
        a(f"v_cndmask_b32 v{S+128+r}, 0, v{S+r}, s[{40+2*r}:{41+2*r}]")
    for r in range(16):
        a(f"v_sub_f32 v{S+r}, v{S+r}, v{S+128+r}")
    pack(a, S, S)
    pack(a, S + 128, S + 128)
    for n in range(9):
        j = n
        s = S + 16 * j
        if n + 2 < 9:
            v_read(n + 2)
        rem = min(9 - n - 1, 2)
        a(f"s_waitcnt lgkmcnt({4*rem})")
        d = KB + 8 * (n % 3)
        cc = "0" if n == 0 else f"v[{O}:{O+15}]"
        a(f"v_mfma_f32_32x32x16_bf16 v[{O}:{O+15}], v[{d}:{d+3}], v[{s}:{s+3}], {cc}")
        a(f"v_mfma_f32_32x32x16_bf16 v[{O}:{O+15}], v[{d+4}:{d+7}], v[{s+4}:{s+7}], v[{O}:{O+15}]")
        if j + 1 <= 7:
            expo(j + 1)
            pack(a, S + 16 * (j + 1), S + 16 * (j + 1))
    stamp(a, 3)
    a(f"""
v_and_b32 v13, 31, v1
s_mul_i32 s37, s22, 7
v_add_u32 v2, s37, v14
v_lshlrev_b32 v3, 4, v13
s_lshl_b32 s36, s20, 6
s_lshl_b32 s37, s21, 3
s_add_u32 s36, s36, s37
s_add_u32 s36, s36, s23
s_mul_i32 s36, s36, {O_RT}
s_add_u32 s36, s36, {O_OFF}
v_lshrrev_b32 v4, 1, v2
v_and_b32 v5, 1, v2
v_lshl_add_u32 v4, v4, 9, v3
v_lshl_add_u32 v4, v5, 3, v4
""")
    a(f"v_mov_b32 v{T1}, v{O+12}")
    a(f"v_mov_b32 v{T2}, v{O+12}")
    a(f"v_permlane32_swap_b32 v{T1}, v{T2}")
    a(f"v_rcp_f32 v{T2}, v{T2}")
    for r in range(16):
        a(f"v_mul_f32 v{O+r}, v{O+r}, v{T2}")
    pack(a, O, O)
    for rg in range(4):
        if rg == 3:
            a("s_mov_b32 exec_hi, 0")
        a(f"buffer_store_dwordx2 v[{O+2*rg}:{O+2*rg+1}], v4, s[32:35], s36 offen offset:{rg*512} {OSC}")
    a("s_mov_b64 exec, -1")
    stamp_out(a, 5, 1)
    a.label("K2_END")
    a("s_endpgm")
    return a.finish()


K3_LDS = 448 * 128


def k3():
    a = Asm()
    a(f"""
.p2align 6
PH3:
s_cmp_ge_u32 s2, 224
s_cbranch_scc1 K3_END
""")
    stamp(a, 0)
    a(f"""
s_load_dwordx2 s[4:5], s[0:1], 16
s_load_dwordx2 s[6:7], s[0:1], 40
s_load_dwordx2 s[8:9], s[0:1], 48
s_load_dwordx2 s[10:11], s[0:1], 64
s_and_b32 s36, s2, 7
s_lshr_b32 s37, s2, 3
s_and_b32 s20, s36, 1
s_lshr_b32 s38, s36, 1
s_lshl_b32 s38, s38, 2
s_and_b32 s39, s37, 3
s_add_u32 s21, s38, s39
s_lshr_b32 s22, s37, 2
v_lshrrev_b32 v2, 6, v0
v_and_b32 v1, 63, v0
v_lshrrev_b32 v8, 3, v1
v_readfirstlane_b32 s23, v2
s_cmp_lt_u32 s23, 4
s_cbranch_scc1 K3_COMPUTE
s_sub_u32 s76, s23, 4
v_and_b32 v9, 7, v1
v_lshrrev_b32 v10, 4, v1
v_and_b32 v10, 1, v10
v_lshlrev_b32 v10, 2, v10
v_xor_b32 v9, v9, v10
v_mul_u32_u24 v8, 896, v8
v_lshlrev_b32 v9, 4, v9
v_add_u32 v2, v8, v9
s_mul_i32 s36, s76, 14336
s_lshl_b32 s37, s22, 7
s_add_u32 s36, s36, s37
s_lshl_b32 s37, s76, 11
s_waitcnt lgkmcnt(0)
s_cmp_eq_u32 s20, 0
s_cselect_b32 s24, s4, s6
s_cselect_b32 s25, s5, s7
s_and_b32 s25, s25, 0xffff
s_mov_b32 s26, {WOBYTES}
s_mov_b32 s27, 0x20000
""")
    for blk in range(7):
        for q in range(2):
            a(f"s_add_u32 s38, s36, {(blk*64 + 8*q)*896}")
            a(f"s_add_u32 m0, s37, {(blk*64 + 8*q)*128}")
            a("buffer_load_dwordx4 v2, s[24:27], s38 offen lds")
    for blk in range(7):
        a(f"s_waitcnt vmcnt({2*(6-blk)})")
        a("s_barrier")
    a("s_endpgm")
    a.label("K3_COMPUTE")
    a(f"""
v_lshlrev_b32 v3, 4, v1
s_lshl_b32 s39, s20, 6
s_lshl_b32 s38, s21, 2
s_add_u32 s39, s39, s38
s_add_u32 s39, s39, s23
s_mul_i32 s39, s39, {O_RT}
s_add_u32 s39, s39, {O_OFF}
s_waitcnt lgkmcnt(0)
s_mov_b32 s32, s10
s_and_b32 s33, s11, 0xffff
s_mov_b32 s34, {WS_BYTES}
s_mov_b32 s35, 0x20000
""")
    BF = 64

    def o_loads(blk):
        for k in range(4):
            st = blk * 4 + k
            d = BF + 4 * st
            a(f"buffer_load_dwordx4 v[{d}:{d+3}], v3, s[32:35], s39 offen offset:{k*1024}")
        a("s_add_u32 s39, s39, 4096")

    PRE = 3
    for blk in range(PRE):
        o_loads(blk)
    a(f"""
s_mov_b32 s28, s8
s_and_b32 s29, s9, 0xffff
s_mov_b32 s30, {OUTBYTES}
s_mov_b32 s31, 0x20000
v_lshrrev_b32 v10, 5, v1
v_lshlrev_b32 v10, 3, v10
v_and_b32 v11, 15, v1
v_lshrrev_b32 v12, 2, v11
v_add_u32 v10, v10, v12
v_lshlrev_b32 v10, 7, v10
v_lshrrev_b32 v12, 3, v11
v_lshlrev_b32 v12, 2, v12
v_lshrrev_b32 v13, 4, v1
v_and_b32 v13, 1, v13
v_lshlrev_b32 v13, 1, v13
v_add_u32 v12, v12, v13
v_and_b32 v13, 3, v11
v_lshrrev_b32 v14, 1, v13
v_add_u32 v12, v12, v14
v_lshlrev_b32 v12, 4, v12
v_and_b32 v13, 1, v13
v_lshlrev_b32 v13, 3, v13
v_add3_u32 v8, v10, v12, v13
v_xor_b32 v9, 64, v8
v_and_b32 v10, 31, v1
v_lshrrev_b32 v11, 5, v1
v_mul_u32_u24 v10, 1792, v10
v_lshlrev_b32 v11, 4, v11
v_add_u32 v10, v10, v11
s_lshl_b32 s36, s21, 7
s_lshl_b32 s37, s23, 5
s_add_u32 s36, s36, s37
s_mul_i32 s36, s36, 1792
s_mul_i32 s37, s20, 896
s_add_u32 s36, s36, s37
s_lshl_b32 s37, s22, 7
s_add_u32 s36, s36, s37
""")
    ACC = (16, 32)
    AF = (48, 56)

    def a_reads(st):
        for nt2 in range(2):
            d = AF[st & 1] + 4 * nt2
            for e in range(2):
                a(f"ds_read_b64_tr_b16 v[{d+2*e}:{d+2*e+1}], v{8+nt2} offset:{(16*st + 4*e)*128}")

    for st in range(28):
        blk, k = st >> 2, st & 3
        if k == 0:
            a("s_barrier")
            if blk == 0:
                stamp(a, 1)
            a_reads(st)
            if blk + PRE <= 6:
                o_loads(blk + PRE)
            outstanding = min(6 - blk, PRE) * 4
            a(f"s_waitcnt vmcnt({outstanding})")
        n = 0
        if k < 3:
            a_reads(st + 1)
            n = 4
        a(f"s_waitcnt lgkmcnt({n})")
        for nt2 in range(2):
            acc = ACC[nt2]
            cc = "0" if st == 0 else f"v[{acc}:{acc+15}]"
            d = AF[st & 1] + 4 * nt2
            bfr = BF + 4 * st
            a(f"v_mfma_f32_32x32x16_bf16 v[{acc}:{acc+15}], v[{d}:{d+3}], v[{bfr}:{bfr+3}], {cc}")
    stamp(a, 2)
    for nt2 in range(2):
        acc = ACC[nt2]
        pack(a, acc, acc)
        for p in range(2):
            b = acc + 4 * p
            a(f"v_permlane32_swap_b32 v{b}, v{b+2}")
            a(f"v_permlane32_swap_b32 v{b+1}, v{b+3}")
            a(f"buffer_store_dwordx4 v[{b}:{b+3}], v10, s[28:31], s36 offen offset:{nt2*64 + p*32} {OUTSC}")
    stamp_out(a, 4, 2)
    a.label("K3_END")
    a("s_endpgm")
    return a.finish()


def desc(name, vgpr, sgpr):
    acc = (vgpr + 3) // 4 * 4
    return f""".amdhsa_kernel {name}
  .amdhsa_next_free_vgpr {vgpr}
  .amdhsa_next_free_sgpr {sgpr}
  .amdhsa_accum_offset {acc}
  .amdhsa_group_segment_fixed_size 0
  .amdhsa_kernarg_size 72
  .amdhsa_user_sgpr_count 2
  .amdhsa_user_sgpr_kernarg_segment_ptr 1
  .amdhsa_system_sgpr_workgroup_id_x 1
.end_amdhsa_kernel
"""


def main():
    out = HEADER
    out += f"; @launch kernel={KN} grid=(232,1,1) block=(512,1,1) lds={K1_LDS}\n"
    out += f"; @launch kernel={KN} grid=(256,1,1) block=(512,1,1) lds={K2_LDS}\n"
    out += f"; @launch kernel={KN} grid=(224,1,1) block=(512,1,1) lds={K3_LDS}\n"
    out += '.amdgcn_target "amdgcn-amd-amdhsa--gfx950"\n.text\n'
    out += k1()
    out += k2()
    out += k3()
    out += "CODE_END:\n"
    out += '.section .rodata,"a"\n.p2align 6\n'
    out += desc(KN, 240, 102)
    args = [x for x in sys.argv[1:] if not x.startswith("--")]
    path = args[0] if args else f"cdna_kernels/{NAME}.s"
    open(path, "w").write(out)


main()
```

```python
import sys, struct, math
sys.path.insert(0, "dev")
from asmlib import Asm

NAME = "concat_heads__sliding_block__sliding_block__prompt"
HEADER = open(f"cdna_kernels/{NAME}.s.ref").read().split("; Override launch geometry")[0]
STAMPS = "--stamp" in sys.argv
MIMIC = "--nomimic" not in sys.argv
TOUCH = False
PRO = 1 if "--p1" in sys.argv else 2
STMOD = [x[5:].replace("_", " ") for x in sys.argv if x.startswith("--st=")]
STMOD = STMOD[0] if STMOD else "sc1"
OSC = "sc1" if "--osc1" in sys.argv else ""
OUTSC = "sc1" if "--outsc1" in sys.argv else ("nt" if "--outnt" in sys.argv else "")
TI = [int(x[5:]) for x in sys.argv if x.startswith("--ti=")]
TI = TI[0] if TI else 4
RR = [int(x[4:]) for x in sys.argv if x.startswith("--r=")]
RR = RR[0] if RR else 3
if RR == 1:
    ROT = "s_mov_b32 s74, 0"
elif RR == 2:
    ROT = "s_add_u32 s39, s39, s22\ns_and_b32 s39, s39, 1\ns_mul_i32 s74, s39, 3"
elif RR == 3:
    ROT = "s_add_u32 s39, s39, s22\ns_mul_i32 s38, s39, 86\ns_lshr_b32 s38, s38, 8\ns_mul_i32 s38, s38, 3\ns_sub_u32 s39, s39, s38\ns_lshl_b32 s74, s39, 1"
elif RR == 4:
    ROT = "s_add_u32 s39, s39, s22\ns_and_b32 s39, s39, 3\ns_mul_i32 s74, s39, 7\ns_lshr_b32 s74, s74, 2"
else:
    ROT = "s_lshl_b32 s39, s39, 1\ns_add_u32 s39, s39, s22\ns_cmp_ge_u32 s39, 7\ns_cselect_b32 s38, 7, 0\ns_sub_u32 s74, s39, s38"


KN = "fused_kernel"


def ldsu(n):
    return (n + 1279) // 1280 * 5


def f32bits(x):
    return struct.unpack("<I", struct.pack("<f", x))[0]


XBYTES = 2048 * 896
WBYTES = 448 * 2688
WOBYTES = 448 * 896
OUTBYTES = 2048 * 1792
RT_STRIDE = 336 * 256
QKV_BYTES = 2 * 64 * RT_STRIDE
O_OFF = QKV_BYTES + 4096
O_RT = 56 * 512
WS_BYTES = O_OFF + 2 * 64 * O_RT
STAMP_OFF = 32 << 20
CEXP = (28 ** -0.5) * math.log2(math.e)


def stamp(a, i):
    if STAMPS:
        a("s_waitcnt lgkmcnt(0)")
        a(f"s_memtime s[{80+2*i}:{81+2*i}]")
        a("s_waitcnt lgkmcnt(0)")


def stamp_out(a, n, kidx, last=None):
    if STAMPS:
        a("s_waitcnt vmcnt(0)")
        stamp(a, n - 1 if last is None else last)
        a("s_mov_b32 s34, 0x4000000")
        a("s_lshl_b32 s36, s2, 3")
        a("s_add_u32 s36, s36, s23")
        a("s_lshl_b32 s36, s36, 6")
        a(f"s_add_u32 s36, s36, {STAMP_OFF + kidx * (1 << 20)}")
        a("v_mov_b32 v3, 0")
        a("s_mov_b64 exec, 1")
        for i in range(n):
            a(f"v_mov_b32 v4, s{80+2*i}")
            a(f"buffer_store_dword v4, v3, s[32:35], s36 offen offset:{4*i}")
            a("s_nop 1")


def pack(a, src, dst):
    for i in range(8):
        a(f"v_cvt_pk_bf16_f32 v{dst+i}, v{src+2*i}, v{src+2*i+1}")


K1_STAGE = 40960
K1_LDS = 4 * K1_STAGE
K1_WOFF = 16384


def k1():
    a = Asm()
    a(f"""
.globl {KN}
.p2align 8
.type {KN},@function
{KN}:
s_getreg_b32 s3, hwreg(HW_REG_LDS_ALLOC, 12, 10)
s_cmp_lt_u32 s3, 244
s_cbranch_scc1 PH3
s_cmp_lt_u32 s3, 400
s_cbranch_scc1 PH2
s_cmp_ge_u32 s2, 224
s_cbranch_scc1 K1_HELP
""")
    stamp(a, 0)
    a(f"""
s_load_dwordx8 s[4:11], s[0:1], 0
s_load_dwordx4 s[12:15], s[0:1], 32
s_load_dwordx2 s[16:17], s[0:1], 64
s_and_b32 s36, s2, 7
s_lshr_b32 s37, s2, 3
s_and_b32 s20, s36, 1
s_lshr_b32 s38, s36, 1
s_lshl_b32 s38, s38, 2
s_and_b32 s39, s37, 3
s_add_u32 s21, s38, s39
s_lshr_b32 s22, s37, 2
{ROT}
v_lshrrev_b32 v2, 6, v0
v_and_b32 v1, 63, v0
s_nop 0
v_readfirstlane_b32 s23, v2
s_cmp_lt_u32 s23, 4
s_cbranch_scc1 K1_COMPUTE
s_sub_u32 s76, s23, 4
""")
    for ip, vd in enumerate(("v2", "v3", "v4")):
        a(f"""
v_add_u32 v8, {64*ip}, v1
v_mul_u32_u24 v9, 2731, v8
v_lshrrev_b32 v9, 16, v9
v_mul_u32_u24 v10, 24, v9
v_sub_u32 v10, v8, v10
v_lshrrev_b32 v11, 1, v9
v_and_b32 v11, 1, v11
v_lshlrev_b32 v11, 2, v11
v_xor_b32 v10, v10, v11
v_mul_u32_u24 v9, 2688, v9
v_lshlrev_b32 v10, 4, v10
v_add_u32 {vd}, v9, v10
""")
    a("""
v_lshrrev_b32 v8, 3, v1
v_and_b32 v9, 7, v1
v_lshrrev_b32 v10, 4, v1
v_xor_b32 v11, v9, v10
v_mul_u32_u24 v8, 896, v8
v_lshlrev_b32 v12, 4, v11
v_add_u32 v5, v8, v12
v_xor_b32 v11, 4, v11
v_lshlrev_b32 v12, 4, v11
v_add_u32 v6, v8, v12
s_lshl_b32 s36, s21, 7
s_lshl_b32 s37, s76, 5
s_add_u32 s36, s36, s37
s_mul_i32 s70, s36, 896
s_mul_i32 s36, s76, 43008
s_mul_i32 s37, s22, 384
s_add_u32 s71, s36, s37
s_lshl_b32 s72, s76, 12
s_mul_i32 s73, s76, 6144
s_waitcnt lgkmcnt(0)
""")
    a(f"""
s_add_u32 s73, s73, {K1_WOFF}
s_cmp_eq_u32 s20, 0
s_cselect_b32 s24, s4, s10
s_cselect_b32 s25, s5, s11
s_cselect_b32 s28, s6, s12
s_cselect_b32 s29, s7, s13
s_and_b32 s25, s25, 0xffff
s_and_b32 s29, s29, 0xffff
s_mov_b32 s26, {XBYTES}
s_mov_b32 s27, 0x20000
s_mov_b32 s30, {WBYTES}
s_mov_b32 s31, 0x20000
""")

    def dma(i):
        st = (i % 4) * K1_STAGE
        a("s_lshl_b32 s36, s74, 7\ns_add_u32 s36, s36, s70\ns_mul_i32 s37, s74, 172032\ns_add_u32 s37, s37, s71\n"
          "s_add_u32 s74, s74, 1\ns_cmp_eq_u32 s74, 7\ns_cselect_b32 s74, 0, s74")
        for q in range(6):
            a(f"s_add_u32 s38, s37, {(q//3)*8*2688}\ns_add_u32 m0, s73, {st + q*1024}\n"
              f"buffer_load_dwordx4 v{2+q%3}, s[28:31], s38 offen lds")
        for q in range(4):
            a(f"s_add_u32 s38, s36, {q*7168}\ns_add_u32 m0, s72, {st + q*1024}\n"
              f"buffer_load_dwordx4 v{5+(q&1)}, s[24:27], s38 offen lds")

    if PRO == 2:
        dma(0)
        dma(1)
        for i in range(7):
            a(f"s_waitcnt vmcnt({10 if i < 6 else 0})")
            a("s_barrier")
            if i + 2 <= 6:
                dma(i + 2)
    else:
        dma(0)
        a("s_waitcnt vmcnt(0)")
        a("s_barrier")
        dma(1)
        dma(2)
        for i in range(1, 7):
            a(f"s_waitcnt vmcnt({10 if i < 6 else 0})")
            a("s_barrier")
            if i + 2 <= 6:
                dma(i + 2)
    a("s_endpgm")
    a.label("K1_COMPUTE")
    a(f"""
s_and_b32 s36, s23, 1
s_lshl_b32 s36, s36, 13
v_and_b32 v12, 31, v1
v_lshrrev_b32 v13, 5, v1
v_lshrrev_b32 v14, 1, v12
v_and_b32 v14, 7, v14
v_xor_b32 v14, v14, v13
v_lshlrev_b32 v14, 4, v14
v_lshlrev_b32 v15, 7, v12
v_add3_u32 v7, v15, v14, s36
v_xor_b32 v8, 32, v7
v_xor_b32 v9, 64, v7
v_xor_b32 v10, 96, v7
""")
    a(f"""
s_lshr_b32 s36, s23, 1
s_mul_i32 s36, s36, 3
v_lshrrev_b32 v13, 5, v1
v_lshlrev_b32 v13, 3, v13
v_and_b32 v14, 15, v1
v_lshrrev_b32 v15, 2, v14
v_add_u32 v13, v13, v15
v_mul_u32_u24 v13, 384, v13
v_lshrrev_b32 v15, 4, v1
v_and_b32 v15, 1, v15
v_lshlrev_b32 v15, 5, v15
v_and_b32 v12, 3, v14
v_lshlrev_b32 v12, 3, v12
v_add3_u32 v13, v13, v15, v12
v_add_u32 v13, {K1_WOFF}, v13
v_lshrrev_b32 v14, 3, v14
""")
    WA, XA = 160, 172
    for m in range(3):
        a(f"""
s_add_u32 s37, s36, {m}
v_xor_b32 v12, s37, v14
v_lshlrev_b32 v12, 6, v12
v_add_u32 v11, v13, v12
""")
        for s4 in range(4):
            a(f"v_add_u32 v{WA+3*s4+m}, {s4*K1_STAGE}, v11")
    for s4 in range(4):
        for ks in range(4):
            a(f"v_add_u32 v{XA+4*s4+ks}, {s4*K1_STAGE}, v{7+ks}")
    a(f"""
s_waitcnt lgkmcnt(0)
s_mov_b32 s32, s16
s_and_b32 s33, s17, 0xffff
s_mov_b32 s34, {WS_BYTES}
s_mov_b32 s35, 0x20000
v_lshlrev_b32 v2, 3, v1
s_lshl_b32 s36, s20, 6
s_lshl_b32 s37, s21, 2
s_add_u32 s36, s36, s37
s_and_b32 s37, s23, 1
s_lshl_b32 s37, s37, 1
s_add_u32 s36, s36, s37
s_mul_i32 s36, s36, {RT_STRIDE}
s_lshr_b32 s37, s23, 1
s_mul_i32 s37, s37, 3
s_mul_i32 s38, s22, 6
s_add_u32 s37, s37, s38
s_lshl_b32 s37, s37, 11
s_add_u32 s36, s36, s37
""")
    ACC = 16
    XF = (112, 120)
    WF = (128, 140)

    def read_list(step):
        i, ks = step >> 2, step & 3
        s4 = i % 4
        L = []
        d = XF[step & 1]
        L.append(f"ds_read_b128 v[{d}:{d+3}], v{XA+4*s4+ks}")
        for m in range(3):
            dw = WF[step & 1] + 4 * m
            L.append(f"ds_read_b64_tr_b16 v[{dw}:{dw+1}], v{WA+3*s4+m} offset:{(16*ks)*384}")
            L.append(f"ds_read_b64_tr_b16 v[{dw+2}:{dw+3}], v{WA+3*s4+m} offset:{(16*ks+4)*384}")
        L.append(f"ds_read_b128 v[{d+4}:{d+7}], v{XA+4*s4+ks} offset:4096")
        return L

    a("s_barrier")
    stamp(a, 1)
    for r in read_list(0):
        a(r)
    for step in range(28):
        i, ks = step >> 2, step & 3
        fill = []
        if ks == 2 and i + 1 <= 6:
            a("s_barrier")
        if step + 1 < 28:
            fill = read_list(step + 1)
        a("s_waitcnt lgkmcnt(0)")
        order = [(0, 0), (0, 1), (0, 2), (1, 0), (1, 1), (1, 2)]
        for n, (aa, m) in enumerate(order):
            acc = ACC + (aa * 3 + m) * 16
            cc = "0" if step == 0 else f"v[{acc}:{acc+15}]"
            wf = WF[step & 1] + 4 * m
            xf = XF[step & 1] + 4 * aa
            a(f"v_mfma_f32_32x32x16_bf16 v[{acc}:{acc+15}], v[{wf}:{wf+3}], v[{xf}:{xf+3}], {cc}")
            for _ in range(2):
                if fill:
                    a(fill.pop(0))
        for x in fill:
            a(x)
    stamp(a, 2)
    for aa in range(2):
        if aa:
            a(f"s_add_u32 s36, s36, {RT_STRIDE}")
        for m in range(3):
            acc = ACC + (aa * 3 + m) * 16
            pack(a, acc, acc)
            a(f"s_add_u32 s37, s36, {m*2048}")
            for rg in range(4):
                a(f"buffer_store_dwordx2 v[{acc+2*rg}:{acc+2*rg+1}], v2, s[32:35], s37 offen offset:{rg*512} {STMOD}")
    stamp_out(a, 4, 0)
    a.label("K1_END")
    a("s_endpgm")
    a.label("K1_HELP")
    a(f"""
s_cmp_ge_u32 s2, 232
s_cbranch_scc1 K1_END
s_getpc_b64 s[4:5]
K1_PC:
s_sub_u32 s4, s4, K1_PC-{KN}
s_subb_u32 s5, s5, 0
v_lshlrev_b32 v1, 7, v0
s_mov_b32 s6, CODE_END-{KN}-4
v_min_u32 v1, s6, v1
global_load_dword v2, v1, s[4:5]
s_endpgm
""")
    return a.finish()


K2_LDS = 65536
K2_LDSU = ldsu(65536)
K3_LDSU = ldsu(448 * 128)


def k2():
    a = Asm()
    a(f"""
.p2align 6
PH2:
s_cmp_ge_u32 s2, 256
s_cbranch_scc1 K2_END
""")
    stamp(a, 0)
    a(f"""
s_load_dwordx2 s[16:17], s[0:1], 64
s_load_dwordx2 s[4:5], s[0:1], 16
s_load_dwordx2 s[6:7], s[0:1], 40
s_and_b32 s36, s2, 7
s_lshr_b32 s37, s2, 3
s_and_b32 s20, s36, 1
s_and_b32 s38, s36, 6
s_and_b32 s39, s37, 1
s_add_u32 s21, s38, s39
s_lshr_b32 s22, s37, 1
v_lshrrev_b32 v2, 6, v0
v_and_b32 v1, 63, v0
v_and_b32 v13, 31, v1
v_readfirstlane_b32 s23, v2
v_lshrrev_b32 v14, 5, v1
v_lshrrev_b32 v8, 4, v1
v_and_b32 v9, 15, v1
v_lshlrev_b32 v10, 1, v8
v_xor_b32 v10, v9, v10
v_lshlrev_b32 v10, 4, v10
v_lshl_add_u32 v4, v8, 8, v10
v_xor_b32 v5, 0x80, v4
v_add_u32 v5, 0x400, v5
v_lshlrev_b32 v6, 3, v13
v_lshl_add_u32 v6, v14, 9, v6
s_waitcnt lgkmcnt(0)
s_mov_b32 s32, s16
s_and_b32 s33, s17, 0xffff
s_mov_b32 s34, {WS_BYTES}
s_mov_b32 s35, 0x20000
; s36 = ((b*64 + 8t)*336 + 7h)*256
s_lshl_b32 s36, s20, 6
s_lshl_b32 s37, s21, 3
s_add_u32 s36, s36, s37
s_mul_i32 s36, s36, {RT_STRIDE}
s_mul_i32 s37, s22, 1792
s_add_u32 s36, s36, s37
s_mul_i32 s37, s23, {2*RT_STRIDE}
s_add_u32 s38, s36, s37
s_sub_u32 s38, s38, {8*RT_STRIDE - 28672}
s_lshl_b32 s37, s23, 12
s_cmp_eq_u32 s21, 0
s_cselect_b32 s40, 1, 0
s_cmp_lt_u32 s23, 4
s_cselect_b32 s41, 1, 0
s_and_b32 s75, s40, s41
s_cmp_eq_u32 s75, 1
s_cbranch_scc1 K2_FILL
""")
    for u in range(2):
        for q in range(2):
            a(f"s_add_u32 m0, s37, {u*2048 + q*1024}")
            a(f"s_add_u32 s41, s38, {u*RT_STRIDE}")
            a(f"buffer_load_dwordx4 v{4+q}, s[32:35], s41 offen lds")
    a("s_branch K2_Q")
    a.label("K2_FILL")
    a("""
v_mov_b32 v8, 0
v_mov_b32 v9, 0
v_mov_b32 v10, 0
v_mov_b32 v11, 0
v_lshlrev_b32 v12, 4, v1
v_add_u32 v12, s37, v12
""")
    for q in range(4):
        a(f"ds_write_b128 v12, v[8:11] offset:{q*1024}")
        a(f"ds_write_b128 v12, v[8:11] offset:{32768 + q*1024}")
    a("s_waitcnt lgkmcnt(0)")
    a.label("K2_Q")
    a(f"""
s_mul_i32 s39, s23, {RT_STRIDE}
s_add_u32 s39, s39, s36
buffer_load_dwordx2 v[16:17], v6, s[32:35], s39 offen
buffer_load_dwordx2 v[18:19], v6, s[32:35], s39 offen offset:256
buffer_load_dwordx2 v[20:21], v6, s[32:35], s39 offen offset:1024
buffer_load_dwordx2 v[22:23], v6, s[32:35], s39 offen offset:1280
""")
    a("""
v_lshlrev_b32 v15, 2, v14
v_sub_u32 v15, v13, v15
""")
    for r in range(16):
        kr = (r & 3) + 8 * (r >> 2)
        a(f"v_cmp_le_i32 s[{40+2*r}:{41+2*r}], {kr}, v15")
    a(f"""
v_lshrrev_b32 v8, 1, v13
v_xor_b32 v8, 14, v8
v_lshlrev_b32 v8, 4, v8
v_and_b32 v9, 1, v13
v_lshl_add_u32 v8, v9, 3, v8
v_lshl_add_u32 v8, v14, 11, v8
v_add_u32 v8, s37, v8
s_cmp_eq_u32 s75, 1
s_cselect_b32 s36, 0x3f80, 0
v_mov_b32 v10, s36
v_mov_b32 v11, 0
v_mov_b32 v12, 0x3f80
""")
    KA = 56
    VA = 60
    a("s_lshl_b32 s36, s23, 11")
    a("""
v_lshrrev_b32 v2, 1, v13
v_and_b32 v3, 1, v13
v_lshlrev_b32 v3, 3, v3
v_add_u32 v3, s36, v3
""")
    for f in range(2):
        for z in range(2):
            a(f"""
v_lshl_add_u32 v7, v14, 1, {4*f+z}
v_lshlrev_b32 v9, 1, v7
v_and_b32 v9, 15, v9
v_xor_b32 v9, v9, v2
v_lshlrev_b32 v9, 4, v9
v_lshl_add_u32 v9, v7, 8, v9
v_add_u32 v{KA+2*f+z}, v9, v3
""")
    a("""
v_and_b32 v2, 15, v1
v_lshrrev_b32 v3, 4, v1
v_and_b32 v3, 1, v3
v_and_b32 v7, 3, v2
v_lshl_add_u32 v3, v3, 2, v7
v_lshrrev_b32 v2, 2, v2
v_lshl_add_u32 v2, v14, 2, v2
""")
    for f in range(2):
        for e in range(2):
            a(f"""
v_add_u32 v7, {16*f+8*e}, v2
v_lshrrev_b32 v9, 1, v7
v_lshlrev_b32 v15, 1, v3
v_xor_b32 v9, v9, v15
v_lshlrev_b32 v9, 4, v9
v_lshl_add_u32 v9, v3, 8, v9
v_and_b32 v7, 1, v7
v_lshl_add_u32 v9, v7, 3, v9
v_add_u32 v{VA+2*f+e}, s36, v9
""")
    CP = 64
    MP = 66
    T1, T2 = 68, 69
    a(f"v_mov_b32 v{CP}, {f32bits(CEXP if not MIMIC else math.log2(math.e))}")
    a(f"v_mov_b32 v{CP+1}, {f32bits(CEXP if not MIMIC else math.log2(math.e))}")
    a(f"v_mov_b32 v70, {f32bits(28 ** -0.5)}")
    a(f"v_mov_b32 v71, {f32bits(28 ** -0.5)}")
    a("""
s_waitcnt vmcnt(0)
ds_write_b64 v8, v[10:11] offset:1792
s_mov_b32 exec_lo, 0
v_mov_b32 v22, 0xdf80
v_mov_b32 v23, 0
s_mov_b64 exec, -1
s_waitcnt lgkmcnt(0)
s_barrier
s_cmp_eq_u32 s75, 1
s_cbranch_scc1 K2_NOV
""")
    for u in range(2):
        for q in range(2):
            a(f"s_add_u32 m0, s37, {32768 + u*2048 + q*1024}")
            a(f"s_add_u32 s77, s38, {u*RT_STRIDE + 28672}")
            a(f"buffer_load_dwordx4 v{4+q}, s[32:35], s77 offen lds")
    a.label("K2_NOV")
    stamp(a, 1)
    QF = 16
    O = 24
    KB = 72
    S = 96
    order = [0, 8, 1, 2, 3, 4, 5, 6, 7]

    def k_read(n):
        j = order[n]
        d = KB + 8 * (n % 3)
        for f in range(2):
            for z in range(2):
                a(f"ds_read_b64 v[{d+4*f+2*z}:{d+4*f+2*z+1}], v{KA+2*f+z} offset:{j*2048}")

    def v_read(n):
        j = n
        d = KB + 8 * (n % 3)
        for f in range(2):
            for e in range(2):
                a(f"ds_read_b64_tr_b16 v[{d+4*f+2*e}:{d+4*f+2*e+1}], v{VA+2*f+e} offset:{32768 + j*2048}")

    def maxes(j, first):
        s = S + 16 * j
        i = 0
        if first:
            a(f"v_max3_f32 v{T1}, v{s}, v{s+1}, v{s+2}")
            a(f"v_max_f32 v{T1}, v{T1}, v{s+3}")
            i = 4
        while i < 16:
            a(f"v_max3_f32 v{T1}, v{T1}, v{s+i}, v{s+i+1}")
            i += 2

    k_read(0)
    k_read(1)
    for n in range(9):
        if n + 2 < 9:
            k_read(n + 2)
        rem = min(9 - n - 1, 2)
        a(f"s_waitcnt lgkmcnt({4*rem})")
        j = order[n]
        d = KB + 8 * (n % 3)
        s = S + 16 * j
        a(f"v_mfma_f32_32x32x16_bf16 v[{s}:{s+15}], v[{d}:{d+3}], v[{QF}:{QF+3}], 0")
        a(f"v_mfma_f32_32x32x16_bf16 v[{s}:{s+15}], v[{d+4}:{d+7}], v[{QF+4}:{QF+7}], v[{s}:{s+15}]")
        if n == 3:
            for r in range(16):
                a(f"v_cndmask_b32 v{S+r}, v{S+r}, v{S+128+r}, s[{40+2*r}:{41+2*r}]")
        if n == 4:
            maxes(0, True)
        if n >= 4:
            maxes(order[n - 2], False)
    a("""
s_waitcnt vmcnt(0)
v_mov_b32 v13, 0
""")
    a("ds_write_b64 v8, v[12:13] offset:34560")
    maxes(order[7], False)
    a("s_waitcnt lgkmcnt(0)")
    a("s_barrier")
    maxes(order[8], False)
    stamp(a, 2)
    a(f"""
s_cmp_eq_u32 s20, 0
s_cselect_b32 s24, s4, s6
s_cselect_b32 s25, s5, s7
s_and_b32 s25, s25, 0xffff
s_mov_b32 s26, {WOBYTES}
s_mov_b32 s27, 0x20000
s_lshr_b32 s36, s2, 3
s_lshl_b32 s36, s36, 3
s_add_u32 s36, s36, s23
s_mul_i32 s36, s36, 1664
v_and_b32 v2, 15, v1
v_lshlrev_b32 v2, 7, v2
buffer_load_dword v48, v2, s[24:27], s36 offen
""")
    v_read(0)
    v_read(1)
    a(f"v_mov_b32 v{T2}, v{T1}")
    a(f"v_permlane32_swap_b32 v{T1}, v{T2}")
    a(f"v_max_f32 v{T1}, v{T1}, v{T2}")
    if MIMIC:
        a(f"v_cvt_pk_bf16_f32 v{T1}, 0, v{T1}")
        a(f"v_mul_f32 v{T1}, v70, v{T1}")
        a(f"v_cvt_pk_bf16_f32 v{T1}, 0, v{T1}")
    a(f"v_mul_f32 v{MP}, v{CP}, v{T1}")
    a(f"v_xor_b32 v{MP}, 0x80000000, v{MP}")
    a(f"v_mov_b32 v{MP+1}, v{MP}")

    def expo(j):
        s = S + 16 * j
        if MIMIC:
            for r in range(16):
                a(f"v_cvt_pk_bf16_f32 v{s+r}, 0, v{s+r}")
            for r in range(0, 16, 2):
                a(f"v_pk_mul_f32 v[{s+r}:{s+r+1}], v[{s+r}:{s+r+1}], v[70:71]")
            for r in range(16):
                a(f"v_cvt_pk_bf16_f32 v{s+r}, 0, v{s+r}")
        for r in range(0, 16, 2):
            a(f"v_pk_fma_f32 v[{s+r}:{s+r+1}], v[{s+r}:{s+r+1}], v[{CP}:{CP+1}], v[{MP}:{MP+1}]")
        for r in range(16):
            a(f"v_exp_f32 v{s+r}, v{s+r}")

    expo(0)
    for r in range(16):
        a(f"v_cndmask_b32 v{S+128+r}, 0, v{S+r}, s[{40+2*r}:{41+2*r}]")
    for r in range(16):
        a(f"v_sub_f32 v{S+r}, v{S+r}, v{S+128+r}")
    pack(a, S, S)
    pack(a, S + 128, S + 128)
    for n in range(9):
        j = n
        s = S + 16 * j
        if n + 2 < 9:
            v_read(n + 2)
        rem = min(9 - n - 1, 2)
        a(f"s_waitcnt lgkmcnt({4*rem})")
        d = KB + 8 * (n % 3)
        cc = "0" if n == 0 else f"v[{O}:{O+15}]"
        a(f"v_mfma_f32_32x32x16_bf16 v[{O}:{O+15}], v[{d}:{d+3}], v[{s}:{s+3}], {cc}")
        a(f"v_mfma_f32_32x32x16_bf16 v[{O}:{O+15}], v[{d+4}:{d+7}], v[{s+4}:{s+7}], v[{O}:{O+15}]")
        if j + 1 <= 7:
            expo(j + 1)
            pack(a, S + 16 * (j + 1), S + 16 * (j + 1))
    stamp(a, 3)
    a(f"""
v_and_b32 v13, 31, v1
s_mul_i32 s37, s22, 7
v_add_u32 v2, s37, v14
v_lshlrev_b32 v3, 4, v13
s_lshl_b32 s36, s20, 6
s_lshl_b32 s37, s21, 3
s_add_u32 s36, s36, s37
s_add_u32 s36, s36, s23
s_mul_i32 s36, s36, {O_RT}
s_add_u32 s36, s36, {O_OFF}
v_lshrrev_b32 v4, 1, v2
v_and_b32 v5, 1, v2
v_lshl_add_u32 v4, v4, 9, v3
v_lshl_add_u32 v4, v5, 3, v4
""")
    a(f"v_mov_b32 v{T1}, v{O+12}")
    a(f"v_mov_b32 v{T2}, v{O+12}")
    a(f"v_permlane32_swap_b32 v{T1}, v{T2}")
    a(f"v_rcp_f32 v{T2}, v{T2}")
    for r in range(16):
        a(f"v_mul_f32 v{O+r}, v{O+r}, v{T2}")
    pack(a, O, O)
    for rg in range(4):
        if rg == 3:
            a("s_mov_b32 exec_hi, 0")
        a(f"buffer_store_dwordx2 v[{O+2*rg}:{O+2*rg+1}], v4, s[32:35], s36 offen offset:{rg*512} {OSC}")
    a("s_mov_b64 exec, -1")
    stamp_out(a, 5, 1)
    a.label("K2_END")
    a("s_endpgm")
    return a.finish()


K3_LDS = 448 * 128


def k3():
    a = Asm()
    a(f"""
.p2align 6
PH3:
s_cmp_ge_u32 s2, 224
s_cbranch_scc1 K3_END
""")
    stamp(a, 0)
    a(f"""
s_load_dwordx2 s[4:5], s[0:1], 16
s_load_dwordx2 s[6:7], s[0:1], 40
s_load_dwordx2 s[8:9], s[0:1], 48
s_load_dwordx2 s[10:11], s[0:1], 64
s_and_b32 s36, s2, 7
s_lshr_b32 s37, s2, 3
s_and_b32 s20, s36, 1
s_lshr_b32 s38, s36, 1
s_lshl_b32 s38, s38, 2
s_and_b32 s39, s37, 3
s_add_u32 s21, s38, s39
s_lshr_b32 s22, s37, 2
v_lshrrev_b32 v2, 6, v0
v_and_b32 v1, 63, v0
v_lshrrev_b32 v8, 3, v1
v_readfirstlane_b32 s23, v2
s_cmp_lt_u32 s23, 4
s_cbranch_scc1 K3_COMPUTE
s_sub_u32 s76, s23, 4
v_and_b32 v9, 7, v1
v_lshrrev_b32 v10, 4, v1
v_and_b32 v10, 1, v10
v_lshlrev_b32 v10, 2, v10
v_xor_b32 v9, v9, v10
v_mul_u32_u24 v8, 896, v8
v_lshlrev_b32 v9, 4, v9
v_add_u32 v2, v8, v9
s_mul_i32 s36, s76, 14336
s_lshl_b32 s37, s22, 7
s_add_u32 s36, s36, s37
s_lshl_b32 s37, s76, 11
s_waitcnt lgkmcnt(0)
s_cmp_eq_u32 s20, 0
s_cselect_b32 s24, s4, s6
s_cselect_b32 s25, s5, s7
s_and_b32 s25, s25, 0xffff
s_mov_b32 s26, {WOBYTES}
s_mov_b32 s27, 0x20000
""")
    for blk in range(7):
        for q in range(2):
            a(f"s_add_u32 s38, s36, {(blk*64 + 8*q)*896}")
            a(f"s_add_u32 m0, s37, {(blk*64 + 8*q)*128}")
            a("buffer_load_dwordx4 v2, s[24:27], s38 offen lds")
    for blk in range(7):
        a(f"s_waitcnt vmcnt({2*(6-blk)})")
        a("s_barrier")
    a("s_endpgm")
    a.label("K3_COMPUTE")
    a(f"""
v_lshlrev_b32 v3, 4, v1
s_lshl_b32 s39, s20, 6
s_lshl_b32 s38, s21, 2
s_add_u32 s39, s39, s38
s_add_u32 s39, s39, s23
s_mul_i32 s39, s39, {O_RT}
s_add_u32 s39, s39, {O_OFF}
s_waitcnt lgkmcnt(0)
s_mov_b32 s32, s10
s_and_b32 s33, s11, 0xffff
s_mov_b32 s34, {WS_BYTES}
s_mov_b32 s35, 0x20000
""")
    BF = 64

    def o_loads(blk):
        for k in range(4):
            st = blk * 4 + k
            d = BF + 4 * st
            a(f"buffer_load_dwordx4 v[{d}:{d+3}], v3, s[32:35], s39 offen offset:{k*1024}")
        a("s_add_u32 s39, s39, 4096")

    PRE = 3
    for blk in range(PRE):
        o_loads(blk)
    a(f"""
s_mov_b32 s28, s8
s_and_b32 s29, s9, 0xffff
s_mov_b32 s30, {OUTBYTES}
s_mov_b32 s31, 0x20000
v_lshrrev_b32 v10, 5, v1
v_lshlrev_b32 v10, 3, v10
v_and_b32 v11, 15, v1
v_lshrrev_b32 v12, 2, v11
v_add_u32 v10, v10, v12
v_lshlrev_b32 v10, 7, v10
v_lshrrev_b32 v12, 3, v11
v_lshlrev_b32 v12, 2, v12
v_lshrrev_b32 v13, 4, v1
v_and_b32 v13, 1, v13
v_lshlrev_b32 v13, 1, v13
v_add_u32 v12, v12, v13
v_and_b32 v13, 3, v11
v_lshrrev_b32 v14, 1, v13
v_add_u32 v12, v12, v14
v_lshlrev_b32 v12, 4, v12
v_and_b32 v13, 1, v13
v_lshlrev_b32 v13, 3, v13
v_add3_u32 v8, v10, v12, v13
v_xor_b32 v9, 64, v8
v_and_b32 v10, 31, v1
v_lshrrev_b32 v11, 5, v1
v_mul_u32_u24 v10, 1792, v10
v_lshlrev_b32 v11, 4, v11
v_add_u32 v10, v10, v11
s_lshl_b32 s36, s21, 7
s_lshl_b32 s37, s23, 5
s_add_u32 s36, s36, s37
s_mul_i32 s36, s36, 1792
s_mul_i32 s37, s20, 896
s_add_u32 s36, s36, s37
s_lshl_b32 s37, s22, 7
s_add_u32 s36, s36, s37
""")
    ACC = (16, 32)
    AF = (48, 56)

    def a_reads(st):
        for nt2 in range(2):
            d = AF[st & 1] + 4 * nt2
            for e in range(2):
                a(f"ds_read_b64_tr_b16 v[{d+2*e}:{d+2*e+1}], v{8+nt2} offset:{(16*st + 4*e)*128}")

    for st in range(28):
        blk, k = st >> 2, st & 3
        if k == 0:
            a("s_barrier")
            if blk == 0:
                stamp(a, 1)
            a_reads(st)
            if blk + PRE <= 6:
                o_loads(blk + PRE)
            outstanding = min(6 - blk, PRE) * 4
            a(f"s_waitcnt vmcnt({outstanding})")
        n = 0
        if k < 3:
            a_reads(st + 1)
            n = 4
        a(f"s_waitcnt lgkmcnt({n})")
        for nt2 in range(2):
            acc = ACC[nt2]
            cc = "0" if st == 0 else f"v[{acc}:{acc+15}]"
            d = AF[st & 1] + 4 * nt2
            bfr = BF + 4 * st
            a(f"v_mfma_f32_32x32x16_bf16 v[{acc}:{acc+15}], v[{d}:{d+3}], v[{bfr}:{bfr+3}], {cc}")
    stamp(a, 2)
    for nt2 in range(2):
        acc = ACC[nt2]
        pack(a, acc, acc)
        for p in range(2):
            b = acc + 4 * p
            a(f"v_permlane32_swap_b32 v{b}, v{b+2}")
            a(f"v_permlane32_swap_b32 v{b+1}, v{b+3}")
            a(f"buffer_store_dwordx4 v[{b}:{b+3}], v10, s[28:31], s36 offen offset:{nt2*64 + p*32} {OUTSC}")
    stamp_out(a, 4, 2)
    a.label("K3_END")
    a("s_endpgm")
    return a.finish()


def desc(name, vgpr, sgpr):
    acc = (vgpr + 3) // 4 * 4
    return f""".amdhsa_kernel {name}
  .amdhsa_next_free_vgpr {vgpr}
  .amdhsa_next_free_sgpr {sgpr}
  .amdhsa_accum_offset {acc}
  .amdhsa_group_segment_fixed_size 0
  .amdhsa_kernarg_size 72
  .amdhsa_user_sgpr_count 2
  .amdhsa_user_sgpr_kernarg_segment_ptr 1
  .amdhsa_system_sgpr_workgroup_id_x 1
.end_amdhsa_kernel
"""


def main():
    out = HEADER
    out += f"; @launch kernel={KN} grid=(232,1,1) block=(512,1,1) lds={K1_LDS}\n"
    out += f"; @launch kernel={KN} grid=(256,1,1) block=(512,1,1) lds={K2_LDS}\n"
    out += f"; @launch kernel={KN} grid=(224,1,1) block=(512,1,1) lds={K3_LDS}\n"
    out += '.amdgcn_target "amdgcn-amd-amdhsa--gfx950"\n.text\n'
    out += k1()
    out += k2()
    out += k3()
    out += "CODE_END:\n"
    out += '.section .rodata,"a"\n.p2align 6\n'
    out += desc(KN, 240, 102)
    args = [x for x in sys.argv[1:] if not x.startswith("--")]
    path = args[0] if args else f"cdna_kernels/{NAME}.s"
    open(path, "w").write(out)


main()
```

```python
import sys, struct, math
sys.path.insert(0, "dev")
from asmlib import Asm

NAME = "concat_heads__sliding_block__sliding_block__prompt"
HEADER = open(f"cdna_kernels/{NAME}.s.ref").read().split("; Override launch geometry")[0]
STAMPS = "--stamp" in sys.argv
MIMIC = "--nomimic" not in sys.argv
TOUCH = False
PRO = 1 if "--p1" in sys.argv else 2
STMOD = [x[5:].replace("_", " ") for x in sys.argv if x.startswith("--st=")]
STMOD = STMOD[0] if STMOD else "sc1"
OSC = "sc1" if "--osc1" in sys.argv else ""
OUTSC = "sc1" if "--outsc1" in sys.argv else ("nt" if "--outnt" in sys.argv else "")
TI = [int(x[5:]) for x in sys.argv if x.startswith("--ti=")]
TI = TI[0] if TI else 4
RR = [int(x[4:]) for x in sys.argv if x.startswith("--r=")]
RR = RR[0] if RR else 3
if RR == 1:
    ROT = "s_mov_b32 s74, 0"
elif RR == 2:
    ROT = "s_add_u32 s39, s39, s22\ns_and_b32 s39, s39, 1\ns_mul_i32 s74, s39, 3"
elif RR == 3:
    ROT = "s_add_u32 s39, s39, s22\ns_mul_i32 s38, s39, 86\ns_lshr_b32 s38, s38, 8\ns_mul_i32 s38, s38, 3\ns_sub_u32 s39, s39, s38\ns_lshl_b32 s74, s39, 1"
elif RR == 4:
    ROT = "s_add_u32 s39, s39, s22\ns_and_b32 s39, s39, 3\ns_mul_i32 s74, s39, 7\ns_lshr_b32 s74, s74, 2"
else:
    ROT = "s_lshl_b32 s39, s39, 1\ns_add_u32 s39, s39, s22\ns_cmp_ge_u32 s39, 7\ns_cselect_b32 s38, 7, 0\ns_sub_u32 s74, s39, s38"


KN = "fused_kernel"


def ldsu(n):
    return (n + 1279) // 1280 * 5


def f32bits(x):
    return struct.unpack("<I", struct.pack("<f", x))[0]


XBYTES = 2048 * 896
WBYTES = 448 * 2688
WOBYTES = 448 * 896
OUTBYTES = 2048 * 1792
RT_STRIDE = 336 * 256
QKV_BYTES = 2 * 64 * RT_STRIDE
O_OFF = QKV_BYTES + 4096
O_RT = 56 * 512
WS_BYTES = O_OFF + 2 * 64 * O_RT
STAMP_OFF = 32 << 20
CEXP = (28 ** -0.5) * math.log2(math.e)


def stamp(a, i):
    if STAMPS:
        a("s_waitcnt lgkmcnt(0)")
        a(f"s_memtime s[{80+2*i}:{81+2*i}]")
        a("s_waitcnt lgkmcnt(0)")


def stamp_out(a, n, kidx, last=None):
    if STAMPS:
        a("s_waitcnt vmcnt(0)")
        stamp(a, n - 1 if last is None else last)
        a("s_mov_b32 s34, 0x4000000")
        a("s_lshl_b32 s36, s2, 3")
        a("s_add_u32 s36, s36, s23")
        a("s_lshl_b32 s36, s36, 6")
        a(f"s_add_u32 s36, s36, {STAMP_OFF + kidx * (1 << 20)}")
        a("v_mov_b32 v3, 0")
        a("s_mov_b64 exec, 1")
        for i in range(n):
            a(f"v_mov_b32 v4, s{80+2*i}")
            a(f"buffer_store_dword v4, v3, s[32:35], s36 offen offset:{4*i}")
            a("s_nop 1")


def pack(a, src, dst):
    for i in range(8):
        a(f"v_cvt_pk_bf16_f32 v{dst+i}, v{src+2*i}, v{src+2*i+1}")


K1_STAGE = 40960
K1_LDS = 4 * K1_STAGE
K1_WOFF = 16384


def k1():
    a = Asm()
    a(f"""
.globl {KN}
.p2align 8
.type {KN},@function
{KN}:
s_getreg_b32 s3, hwreg(HW_REG_LDS_ALLOC, 12, 10)
s_cmp_lt_u32 s3, 244
s_cbranch_scc1 PH3
s_cmp_lt_u32 s3, 400
s_cbranch_scc1 PH2
s_cmp_ge_u32 s2, 224
s_cbranch_scc1 K1_HELP
""")
    stamp(a, 0)
    a(f"""
s_load_dwordx8 s[4:11], s[0:1], 0
s_load_dwordx4 s[12:15], s[0:1], 32
s_load_dwordx2 s[16:17], s[0:1], 64
s_and_b32 s36, s2, 7
s_lshr_b32 s37, s2, 3
s_and_b32 s20, s36, 1
s_lshr_b32 s38, s36, 1
s_lshl_b32 s38, s38, 2
s_and_b32 s39, s37, 3
s_add_u32 s21, s38, s39
s_lshr_b32 s22, s37, 2
{ROT}
v_lshrrev_b32 v2, 6, v0
v_and_b32 v1, 63, v0
s_nop 0
v_readfirstlane_b32 s23, v2
s_cmp_lt_u32 s23, 4
s_cbranch_scc1 K1_COMPUTE
s_sub_u32 s76, s23, 4
""")
    for ip, vd in enumerate(("v2", "v3", "v4")):
        a(f"""
v_add_u32 v8, {64*ip}, v1
v_mul_u32_u24 v9, 2731, v8
v_lshrrev_b32 v9, 16, v9
v_mul_u32_u24 v10, 24, v9
v_sub_u32 v10, v8, v10
v_lshrrev_b32 v11, 1, v9
v_and_b32 v11, 1, v11
v_lshlrev_b32 v11, 2, v11
v_xor_b32 v10, v10, v11
v_mul_u32_u24 v9, 2688, v9
v_lshlrev_b32 v10, 4, v10
v_add_u32 {vd}, v9, v10
""")
    a("""
v_lshrrev_b32 v8, 3, v1
v_and_b32 v9, 7, v1
v_lshrrev_b32 v10, 4, v1
v_xor_b32 v11, v9, v10
v_mul_u32_u24 v8, 896, v8
v_lshlrev_b32 v12, 4, v11
v_add_u32 v5, v8, v12
v_xor_b32 v11, 4, v11
v_lshlrev_b32 v12, 4, v11
v_add_u32 v6, v8, v12
s_lshl_b32 s36, s21, 7
s_lshl_b32 s37, s76, 5
s_add_u32 s36, s36, s37
s_mul_i32 s70, s36, 896
s_mul_i32 s36, s76, 43008
s_mul_i32 s37, s22, 384
s_add_u32 s71, s36, s37
s_lshl_b32 s72, s76, 12
s_mul_i32 s73, s76, 6144
s_waitcnt lgkmcnt(0)
""")
    a(f"""
s_add_u32 s73, s73, {K1_WOFF}
s_cmp_eq_u32 s20, 0
s_cselect_b32 s24, s4, s10
s_cselect_b32 s25, s5, s11
s_cselect_b32 s28, s6, s12
s_cselect_b32 s29, s7, s13
s_and_b32 s25, s25, 0xffff
s_and_b32 s29, s29, 0xffff
s_mov_b32 s26, {XBYTES}
s_mov_b32 s27, 0x20000
s_mov_b32 s30, {WBYTES}
s_mov_b32 s31, 0x20000
""")

    def dma(i):
        st = (i % 4) * K1_STAGE
        a("s_lshl_b32 s36, s74, 7\ns_add_u32 s36, s36, s70\ns_mul_i32 s37, s74, 172032\ns_add_u32 s37, s37, s71\n"
          "s_add_u32 s74, s74, 1\ns_cmp_eq_u32 s74, 7\ns_cselect_b32 s74, 0, s74")
        for q in range(6):
            a(f"s_add_u32 s38, s37, {(q//3)*8*2688}\ns_add_u32 m0, s73, {st + q*1024}\n"
              f"buffer_load_dwordx4 v{2+q%3}, s[28:31], s38 offen lds")
        for q in range(4):
            a(f"s_add_u32 s38, s36, {q*7168}\ns_add_u32 m0, s72, {st + q*1024}\n"
              f"buffer_load_dwordx4 v{5+(q&1)}, s[24:27], s38 offen lds")

    if PRO == 2:
        dma(0)
        dma(1)
        for i in range(7):
            a(f"s_waitcnt vmcnt({10 if i < 6 else 0})")
            a("s_barrier")
            if i + 2 <= 6:
                dma(i + 2)
    else:
        dma(0)
        a("s_waitcnt vmcnt(0)")
        a("s_barrier")
        dma(1)
        dma(2)
        for i in range(1, 7):
            a(f"s_waitcnt vmcnt({10 if i < 6 else 0})")
            a("s_barrier")
            if i + 2 <= 6:
                dma(i + 2)
    a("s_endpgm")
    a.label("K1_COMPUTE")
    a(f"""
s_and_b32 s36, s23, 1
s_lshl_b32 s36, s36, 13
v_and_b32 v12, 31, v1
v_lshrrev_b32 v13, 5, v1
v_lshrrev_b32 v14, 1, v12
v_and_b32 v14, 7, v14
v_xor_b32 v14, v14, v13
v_lshlrev_b32 v14, 4, v14
v_lshlrev_b32 v15, 7, v12
v_add3_u32 v7, v15, v14, s36
v_xor_b32 v8, 32, v7
v_xor_b32 v9, 64, v7
v_xor_b32 v10, 96, v7
""")
    a(f"""
s_lshr_b32 s36, s23, 1
s_mul_i32 s36, s36, 3
v_lshrrev_b32 v13, 5, v1
v_lshlrev_b32 v13, 3, v13
v_and_b32 v14, 15, v1
v_lshrrev_b32 v15, 2, v14
v_add_u32 v13, v13, v15
v_mul_u32_u24 v13, 384, v13
v_lshrrev_b32 v15, 4, v1
v_and_b32 v15, 1, v15
v_lshlrev_b32 v15, 5, v15
v_and_b32 v12, 3, v14
v_lshlrev_b32 v12, 3, v12
v_add3_u32 v13, v13, v15, v12
v_add_u32 v13, {K1_WOFF}, v13
v_lshrrev_b32 v14, 3, v14
""")
    WA, XA = 160, 172
    for m in range(3):
        a(f"""
s_add_u32 s37, s36, {m}
v_xor_b32 v12, s37, v14
v_lshlrev_b32 v12, 6, v12
v_add_u32 v11, v13, v12
""")
        for s4 in range(4):
            a(f"v_add_u32 v{WA+3*s4+m}, {s4*K1_STAGE}, v11")
    for s4 in range(4):
        for ks in range(4):
            a(f"v_add_u32 v{XA+4*s4+ks}, {s4*K1_STAGE}, v{7+ks}")
    a(f"""
s_waitcnt lgkmcnt(0)
s_mov_b32 s32, s16
s_and_b32 s33, s17, 0xffff
s_mov_b32 s34, {WS_BYTES}
s_mov_b32 s35, 0x20000
v_lshlrev_b32 v2, 3, v1
s_lshl_b32 s36, s20, 6
s_lshl_b32 s37, s21, 2
s_add_u32 s36, s36, s37
s_and_b32 s37, s23, 1
s_lshl_b32 s37, s37, 1
s_add_u32 s36, s36, s37
s_mul_i32 s36, s36, {RT_STRIDE}
s_lshr_b32 s37, s23, 1
s_mul_i32 s37, s37, 3
s_mul_i32 s38, s22, 6
s_add_u32 s37, s37, s38
s_lshl_b32 s37, s37, 11
s_add_u32 s36, s36, s37
""")
    ACC = 16
    XF = (112, 120)
    WF = (128, 140)

    def read_list(step):
        i, ks = step >> 2, step & 3
        s4 = i % 4
        L = []
        d = XF[step & 1]
        L.append(f"ds_read_b128 v[{d}:{d+3}], v{XA+4*s4+ks}")
        for m in range(3):
            dw = WF[step & 1] + 4 * m
            L.append(f"ds_read_b64_tr_b16 v[{dw}:{dw+1}], v{WA+3*s4+m} offset:{(16*ks)*384}")
            L.append(f"ds_read_b64_tr_b16 v[{dw+2}:{dw+3}], v{WA+3*s4+m} offset:{(16*ks+4)*384}")
        L.append(f"ds_read_b128 v[{d+4}:{d+7}], v{XA+4*s4+ks} offset:4096")
        return L

    a("s_barrier")
    stamp(a, 1)
    for r in read_list(0):
        a(r)
    for step in range(28):
        i, ks = step >> 2, step & 3
        fill = []
        if ks == 2 and i + 1 <= 6:
            a("s_barrier")
        if step + 1 < 28:
            fill = read_list(step + 1)
        a("s_waitcnt lgkmcnt(0)")
        order = [(0, 0), (0, 1), (0, 2), (1, 0), (1, 1), (1, 2)]
        for n, (aa, m) in enumerate(order):
            acc = ACC + (aa * 3 + m) * 16
            cc = "0" if step == 0 else f"v[{acc}:{acc+15}]"
            wf = WF[step & 1] + 4 * m
            xf = XF[step & 1] + 4 * aa
            a(f"v_mfma_f32_32x32x16_bf16 v[{acc}:{acc+15}], v[{wf}:{wf+3}], v[{xf}:{xf+3}], {cc}")
            for _ in range(2):
                if fill:
                    a(fill.pop(0))
        for x in fill:
            a(x)
    stamp(a, 2)
    for aa in range(2):
        if aa:
            a(f"s_add_u32 s36, s36, {RT_STRIDE}")
        for m in range(3):
            acc = ACC + (aa * 3 + m) * 16
            pack(a, acc, acc)
            a(f"s_add_u32 s37, s36, {m*2048}")
            for rg in range(4):
                a(f"buffer_store_dwordx2 v[{acc+2*rg}:{acc+2*rg+1}], v2, s[32:35], s37 offen offset:{rg*512} {STMOD}")
    stamp_out(a, 4, 0)
    a.label("K1_END")
    a("s_endpgm")
    a.label("K1_HELP")
    a(f"""
s_cmp_ge_u32 s2, 232
s_cbranch_scc1 K1_END
s_getpc_b64 s[4:5]
K1_PC:
s_sub_u32 s4, s4, K1_PC-{KN}
s_subb_u32 s5, s5, 0
v_lshlrev_b32 v1, 7, v0
s_mov_b32 s6, CODE_END-{KN}-4
v_min_u32 v1, s6, v1
global_load_dword v2, v1, s[4:5]
s_endpgm
""")
    return a.finish()


K2_LDS = 65536
K2_LDSU = ldsu(65536)
K3_LDSU = ldsu(448 * 128)


def k2():
    a = Asm()
    a(f"""
.p2align 6
PH2:
s_cmp_ge_u32 s2, 256
s_cbranch_scc1 K2_END
""")
    stamp(a, 0)
    a(f"""
s_load_dwordx2 s[16:17], s[0:1], 64
s_load_dwordx2 s[4:5], s[0:1], 16
s_load_dwordx2 s[6:7], s[0:1], 40
s_and_b32 s36, s2, 7
s_lshr_b32 s37, s2, 3
s_and_b32 s20, s36, 1
s_and_b32 s38, s36, 6
s_and_b32 s39, s37, 1
s_add_u32 s21, s38, s39
s_lshr_b32 s22, s37, 1
v_lshrrev_b32 v2, 6, v0
v_and_b32 v1, 63, v0
v_and_b32 v13, 31, v1
v_readfirstlane_b32 s23, v2
v_lshrrev_b32 v14, 5, v1
v_lshrrev_b32 v8, 4, v1
v_and_b32 v9, 15, v1
v_lshlrev_b32 v10, 1, v8
v_xor_b32 v10, v9, v10
v_lshlrev_b32 v10, 4, v10
v_lshl_add_u32 v4, v8, 8, v10
v_xor_b32 v5, 0x80, v4
v_add_u32 v5, 0x400, v5
v_lshlrev_b32 v6, 3, v13
v_lshl_add_u32 v6, v14, 9, v6
s_waitcnt lgkmcnt(0)
s_mov_b32 s32, s16
s_and_b32 s33, s17, 0xffff
s_mov_b32 s34, {WS_BYTES}
s_mov_b32 s35, 0x20000
; s36 = ((b*64 + 8t)*336 + 7h)*256
s_lshl_b32 s36, s20, 6
s_lshl_b32 s37, s21, 3
s_add_u32 s36, s36, s37
s_mul_i32 s36, s36, {RT_STRIDE}
s_mul_i32 s37, s22, 1792
s_add_u32 s36, s36, s37
s_mul_i32 s37, s23, {2*RT_STRIDE}
s_add_u32 s38, s36, s37
s_sub_u32 s38, s38, {8*RT_STRIDE - 28672}
s_lshl_b32 s37, s23, 12
s_cmp_eq_u32 s21, 0
s_cselect_b32 s40, 1, 0
s_cmp_lt_u32 s23, 4
s_cselect_b32 s41, 1, 0
s_and_b32 s75, s40, s41
s_cmp_eq_u32 s75, 1
s_cbranch_scc1 K2_FILL
""")
    for u in range(2):
        for q in range(2):
            a(f"s_add_u32 m0, s37, {u*2048 + q*1024}")
            a(f"s_add_u32 s41, s38, {u*RT_STRIDE}")
            a(f"buffer_load_dwordx4 v{4+q}, s[32:35], s41 offen lds")
    a("s_branch K2_Q")
    a.label("K2_FILL")
    a("""
v_mov_b32 v8, 0
v_mov_b32 v9, 0
v_mov_b32 v10, 0
v_mov_b32 v11, 0
v_lshlrev_b32 v12, 4, v1
v_add_u32 v12, s37, v12
""")
    for q in range(4):
        a(f"ds_write_b128 v12, v[8:11] offset:{q*1024}")
        a(f"ds_write_b128 v12, v[8:11] offset:{32768 + q*1024}")
    a("s_waitcnt lgkmcnt(0)")
    a.label("K2_Q")
    a(f"""
s_mul_i32 s39, s23, {RT_STRIDE}
s_add_u32 s39, s39, s36
buffer_load_dwordx2 v[16:17], v6, s[32:35], s39 offen
buffer_load_dwordx2 v[18:19], v6, s[32:35], s39 offen offset:256
buffer_load_dwordx2 v[20:21], v6, s[32:35], s39 offen offset:1024
buffer_load_dwordx2 v[22:23], v6, s[32:35], s39 offen offset:1280
""")
    a("""
v_lshlrev_b32 v15, 2, v14
v_sub_u32 v15, v13, v15
""")
    for r in range(16):
        kr = (r & 3) + 8 * (r >> 2)
        a(f"v_cmp_le_i32 s[{40+2*r}:{41+2*r}], {kr}, v15")
    a(f"""
v_lshrrev_b32 v8, 1, v13
v_xor_b32 v8, 14, v8
v_lshlrev_b32 v8, 4, v8
v_and_b32 v9, 1, v13
v_lshl_add_u32 v8, v9, 3, v8
v_lshl_add_u32 v8, v14, 11, v8
v_add_u32 v8, s37, v8
s_cmp_eq_u32 s75, 1
s_cselect_b32 s36, 0x3f80, 0
v_mov_b32 v10, s36
v_mov_b32 v11, 0
v_mov_b32 v12, 0x3f80
""")
    KA = 56
    VA = 60
    a("s_lshl_b32 s36, s23, 11")
    a("""
v_lshrrev_b32 v2, 1, v13
v_and_b32 v3, 1, v13
v_lshlrev_b32 v3, 3, v3
v_add_u32 v3, s36, v3
""")
    for f in range(2):
        for z in range(2):
            a(f"""
v_lshl_add_u32 v7, v14, 1, {4*f+z}
v_lshlrev_b32 v9, 1, v7
v_and_b32 v9, 15, v9
v_xor_b32 v9, v9, v2
v_lshlrev_b32 v9, 4, v9
v_lshl_add_u32 v9, v7, 8, v9
v_add_u32 v{KA+2*f+z}, v9, v3
""")
    a("""
v_and_b32 v2, 15, v1
v_lshrrev_b32 v3, 4, v1
v_and_b32 v3, 1, v3
v_and_b32 v7, 3, v2
v_lshl_add_u32 v3, v3, 2, v7
v_lshrrev_b32 v2, 2, v2
v_lshl_add_u32 v2, v14, 2, v2
""")
    for f in range(2):
        for e in range(2):
            a(f"""
v_add_u32 v7, {16*f+8*e}, v2
v_lshrrev_b32 v9, 1, v7
v_lshlrev_b32 v15, 1, v3
v_xor_b32 v9, v9, v15
v_lshlrev_b32 v9, 4, v9
v_lshl_add_u32 v9, v3, 8, v9
v_and_b32 v7, 1, v7
v_lshl_add_u32 v9, v7, 3, v9
v_add_u32 v{VA+2*f+e}, s36, v9
""")
    CP = 64
    MP = 66
    T1, T2 = 68, 69
    a(f"v_mov_b32 v{CP}, {f32bits(CEXP if not MIMIC else math.log2(math.e))}")
    a(f"v_mov_b32 v{CP+1}, {f32bits(CEXP if not MIMIC else math.log2(math.e))}")
    a(f"v_mov_b32 v70, {f32bits(28 ** -0.5)}")
    a(f"v_mov_b32 v71, {f32bits(28 ** -0.5)}")
    a("""
s_waitcnt vmcnt(0)
ds_write_b64 v8, v[10:11] offset:1792
s_mov_b32 exec_lo, 0
v_mov_b32 v22, 0xdf80
v_mov_b32 v23, 0
s_mov_b64 exec, -1
s_waitcnt lgkmcnt(0)
s_barrier
s_cmp_eq_u32 s75, 1
s_cbranch_scc1 K2_NOV
""")
    for u in range(2):
        for q in range(2):
            a(f"s_add_u32 m0, s37, {32768 + u*2048 + q*1024}")
            a(f"s_add_u32 s77, s38, {u*RT_STRIDE + 28672}")
            a(f"buffer_load_dwordx4 v{4+q}, s[32:35], s77 offen lds")
    a.label("K2_NOV")
    stamp(a, 1)
    QF = 16
    O = 24
    KB = 72
    S = 96
    order = [0, 8, 1, 2, 3, 4, 5, 6, 7]

    def k_read(n):
        j = order[n]
        d = KB + 8 * (n % 3)
        for f in range(2):
            for z in range(2):
                a(f"ds_read_b64 v[{d+4*f+2*z}:{d+4*f+2*z+1}], v{KA+2*f+z} offset:{j*2048}")

    def v_read(n):
        j = n
        d = KB + 8 * (n % 3)
        for f in range(2):
            for e in range(2):
                a(f"ds_read_b64_tr_b16 v[{d+4*f+2*e}:{d+4*f+2*e+1}], v{VA+2*f+e} offset:{32768 + j*2048}")

    def maxes(j, first):
        s = S + 16 * j
        i = 0
        if MIMIC:
            for r in range(16):
                a(f"v_cvt_pk_bf16_f32 v{s+r}, 0, v{s+r}")
            for r in range(0, 16, 2):
                a(f"v_pk_mul_f32 v[{s+r}:{s+r+1}], v[{s+r}:{s+r+1}], v[70:71]")
            for r in range(16):
                a(f"v_cvt_pk_bf16_f32 v{s+r}, 0, v{s+r}")
        if first:
            a(f"v_max3_f32 v{T1}, v{s}, v{s+1}, v{s+2}")
            a(f"v_max_f32 v{T1}, v{T1}, v{s+3}")
            i = 4
        while i < 16:
            a(f"v_max3_f32 v{T1}, v{T1}, v{s+i}, v{s+i+1}")
            i += 2

    k_read(0)
    k_read(1)
    for n in range(9):
        if n + 2 < 9:
            k_read(n + 2)
        rem = min(9 - n - 1, 2)
        a(f"s_waitcnt lgkmcnt({4*rem})")
        j = order[n]
        d = KB + 8 * (n % 3)
        s = S + 16 * j
        a(f"v_mfma_f32_32x32x16_bf16 v[{s}:{s+15}], v[{d}:{d+3}], v[{QF}:{QF+3}], 0")
        a(f"v_mfma_f32_32x32x16_bf16 v[{s}:{s+15}], v[{d+4}:{d+7}], v[{QF+4}:{QF+7}], v[{s}:{s+15}]")
        if n == 3:
            for r in range(16):
                a(f"v_cndmask_b32 v{S+r}, v{S+r}, v{S+128+r}, s[{40+2*r}:{41+2*r}]")
        if n == 4:
            maxes(0, True)
        if n >= 4:
            maxes(order[n - 2], False)
    a("""
s_waitcnt vmcnt(0)
v_mov_b32 v13, 0
""")
    a("ds_write_b64 v8, v[12:13] offset:34560")
    maxes(order[7], False)
    a("s_waitcnt lgkmcnt(0)")
    a("s_barrier")
    maxes(order[8], False)
    stamp(a, 2)
    a(f"""
s_cmp_eq_u32 s20, 0
s_cselect_b32 s24, s4, s6
s_cselect_b32 s25, s5, s7
s_and_b32 s25, s25, 0xffff
s_mov_b32 s26, {WOBYTES}
s_mov_b32 s27, 0x20000
s_lshr_b32 s36, s2, 3
s_lshl_b32 s36, s36, 3
s_add_u32 s36, s36, s23
s_mul_i32 s36, s36, 1664
v_and_b32 v2, 15, v1
v_lshlrev_b32 v2, 7, v2
buffer_load_dword v48, v2, s[24:27], s36 offen
""")
    v_read(0)
    v_read(1)
    a(f"v_mov_b32 v{T2}, v{T1}")
    a(f"v_permlane32_swap_b32 v{T1}, v{T2}")
    a(f"v_max_f32 v{T1}, v{T1}, v{T2}")
    a(f"v_mul_f32 v{MP}, v{CP}, v{T1}")
    a(f"v_xor_b32 v{MP}, 0x80000000, v{MP}")
    a(f"v_mov_b32 v{MP+1}, v{MP}")

    def expo(j):
        s = S + 16 * j
        for r in range(0, 16, 2):
            a(f"v_pk_fma_f32 v[{s+r}:{s+r+1}], v[{s+r}:{s+r+1}], v[{CP}:{CP+1}], v[{MP}:{MP+1}]")
        for r in range(16):
            a(f"v_exp_f32 v{s+r}, v{s+r}")

    expo(0)
    for r in range(16):
        a(f"v_cndmask_b32 v{S+128+r}, 0, v{S+r}, s[{40+2*r}:{41+2*r}]")
    for r in range(16):
        a(f"v_sub_f32 v{S+r}, v{S+r}, v{S+128+r}")
    pack(a, S, S)
    pack(a, S + 128, S + 128)
    for n in range(9):
        j = n
        s = S + 16 * j
        if n + 2 < 9:
            v_read(n + 2)
        rem = min(9 - n - 1, 2)
        a(f"s_waitcnt lgkmcnt({4*rem})")
        d = KB + 8 * (n % 3)
        cc = "0" if n == 0 else f"v[{O}:{O+15}]"
        a(f"v_mfma_f32_32x32x16_bf16 v[{O}:{O+15}], v[{d}:{d+3}], v[{s}:{s+3}], {cc}")
        a(f"v_mfma_f32_32x32x16_bf16 v[{O}:{O+15}], v[{d+4}:{d+7}], v[{s+4}:{s+7}], v[{O}:{O+15}]")
        if j + 1 <= 7:
            expo(j + 1)
            pack(a, S + 16 * (j + 1), S + 16 * (j + 1))
    stamp(a, 3)
    a(f"""
v_and_b32 v13, 31, v1
s_mul_i32 s37, s22, 7
v_add_u32 v2, s37, v14
v_lshlrev_b32 v3, 4, v13
s_lshl_b32 s36, s20, 6
s_lshl_b32 s37, s21, 3
s_add_u32 s36, s36, s37
s_add_u32 s36, s36, s23
s_mul_i32 s36, s36, {O_RT}
s_add_u32 s36, s36, {O_OFF}
v_lshrrev_b32 v4, 1, v2
v_and_b32 v5, 1, v2
v_lshl_add_u32 v4, v4, 9, v3
v_lshl_add_u32 v4, v5, 3, v4
""")
    a(f"v_mov_b32 v{T1}, v{O+12}")
    a(f"v_mov_b32 v{T2}, v{O+12}")
    a(f"v_permlane32_swap_b32 v{T1}, v{T2}")
    a(f"v_rcp_f32 v{T2}, v{T2}")
    for r in range(16):
        a(f"v_mul_f32 v{O+r}, v{O+r}, v{T2}")
    pack(a, O, O)
    for rg in range(4):
        if rg == 3:
            a("s_mov_b32 exec_hi, 0")
        a(f"buffer_store_dwordx2 v[{O+2*rg}:{O+2*rg+1}], v4, s[32:35], s36 offen offset:{rg*512} {OSC}")
    a("s_mov_b64 exec, -1")
    stamp_out(a, 5, 1)
    a.label("K2_END")
    a("s_endpgm")
    return a.finish()


K3_LDS = 448 * 128


def k3():
    a = Asm()
    a(f"""
.p2align 6
PH3:
s_cmp_ge_u32 s2, 224
s_cbranch_scc1 K3_END
""")
    stamp(a, 0)
    a(f"""
s_load_dwordx2 s[4:5], s[0:1], 16
s_load_dwordx2 s[6:7], s[0:1], 40
s_load_dwordx2 s[8:9], s[0:1], 48
s_load_dwordx2 s[10:11], s[0:1], 64
s_and_b32 s36, s2, 7
s_lshr_b32 s37, s2, 3
s_and_b32 s20, s36, 1
s_lshr_b32 s38, s36, 1
s_lshl_b32 s38, s38, 2
s_and_b32 s39, s37, 3
s_add_u32 s21, s38, s39
s_lshr_b32 s22, s37, 2
v_lshrrev_b32 v2, 6, v0
v_and_b32 v1, 63, v0
v_lshrrev_b32 v8, 3, v1
v_readfirstlane_b32 s23, v2
s_cmp_lt_u32 s23, 4
s_cbranch_scc1 K3_COMPUTE
s_sub_u32 s76, s23, 4
v_and_b32 v9, 7, v1
v_lshrrev_b32 v10, 4, v1
v_and_b32 v10, 1, v10
v_lshlrev_b32 v10, 2, v10
v_xor_b32 v9, v9, v10
v_mul_u32_u24 v8, 896, v8
v_lshlrev_b32 v9, 4, v9
v_add_u32 v2, v8, v9
s_mul_i32 s36, s76, 14336
s_lshl_b32 s37, s22, 7
s_add_u32 s36, s36, s37
s_lshl_b32 s37, s76, 11
s_waitcnt lgkmcnt(0)
s_cmp_eq_u32 s20, 0
s_cselect_b32 s24, s4, s6
s_cselect_b32 s25, s5, s7
s_and_b32 s25, s25, 0xffff
s_mov_b32 s26, {WOBYTES}
s_mov_b32 s27, 0x20000
""")
    for blk in range(7):
        for q in range(2):
            a(f"s_add_u32 s38, s36, {(blk*64 + 8*q)*896}")
            a(f"s_add_u32 m0, s37, {(blk*64 + 8*q)*128}")
            a("buffer_load_dwordx4 v2, s[24:27], s38 offen lds")
    for blk in range(7):
        a(f"s_waitcnt vmcnt({2*(6-blk)})")
        a("s_barrier")
    a("s_endpgm")
    a.label("K3_COMPUTE")
    a(f"""
v_lshlrev_b32 v3, 4, v1
s_lshl_b32 s39, s20, 6
s_lshl_b32 s38, s21, 2
s_add_u32 s39, s39, s38
s_add_u32 s39, s39, s23
s_mul_i32 s39, s39, {O_RT}
s_add_u32 s39, s39, {O_OFF}
s_waitcnt lgkmcnt(0)
s_mov_b32 s32, s10
s_and_b32 s33, s11, 0xffff
s_mov_b32 s34, {WS_BYTES}
s_mov_b32 s35, 0x20000
""")
    BF = 64

    def o_loads(blk):
        for k in range(4):
            st = blk * 4 + k
            d = BF + 4 * st
            a(f"buffer_load_dwordx4 v[{d}:{d+3}], v3, s[32:35], s39 offen offset:{k*1024}")
        a("s_add_u32 s39, s39, 4096")

    PRE = 3
    for blk in range(PRE):
        o_loads(blk)
    a(f"""
s_mov_b32 s28, s8
s_and_b32 s29, s9, 0xffff
s_mov_b32 s30, {OUTBYTES}
s_mov_b32 s31, 0x20000
v_lshrrev_b32 v10, 5, v1
v_lshlrev_b32 v10, 3, v10
v_and_b32 v11, 15, v1
v_lshrrev_b32 v12, 2, v11
v_add_u32 v10, v10, v12
v_lshlrev_b32 v10, 7, v10
v_lshrrev_b32 v12, 3, v11
v_lshlrev_b32 v12, 2, v12
v_lshrrev_b32 v13, 4, v1
v_and_b32 v13, 1, v13
v_lshlrev_b32 v13, 1, v13
v_add_u32 v12, v12, v13
v_and_b32 v13, 3, v11
v_lshrrev_b32 v14, 1, v13
v_add_u32 v12, v12, v14
v_lshlrev_b32 v12, 4, v12
v_and_b32 v13, 1, v13
v_lshlrev_b32 v13, 3, v13
v_add3_u32 v8, v10, v12, v13
v_xor_b32 v9, 64, v8
v_and_b32 v10, 31, v1
v_lshrrev_b32 v11, 5, v1
v_mul_u32_u24 v10, 1792, v10
v_lshlrev_b32 v11, 4, v11
v_add_u32 v10, v10, v11
s_lshl_b32 s36, s21, 7
s_lshl_b32 s37, s23, 5
s_add_u32 s36, s36, s37
s_mul_i32 s36, s36, 1792
s_mul_i32 s37, s20, 896
s_add_u32 s36, s36, s37
s_lshl_b32 s37, s22, 7
s_add_u32 s36, s36, s37
""")
    ACC = (16, 32)
    AF = (48, 56)

    def a_reads(st):
        for nt2 in range(2):
            d = AF[st & 1] + 4 * nt2
            for e in range(2):
                a(f"ds_read_b64_tr_b16 v[{d+2*e}:{d+2*e+1}], v{8+nt2} offset:{(16*st + 4*e)*128}")

    for st in range(28):
        blk, k = st >> 2, st & 3
        if k == 0:
            a("s_barrier")
            if blk == 0:
                stamp(a, 1)
            a_reads(st)
            if blk + PRE <= 6:
                o_loads(blk + PRE)
            outstanding = min(6 - blk, PRE) * 4
            a(f"s_waitcnt vmcnt({outstanding})")
        n = 0
        if k < 3:
            a_reads(st + 1)
            n = 4
        a(f"s_waitcnt lgkmcnt({n})")
        for nt2 in range(2):
            acc = ACC[nt2]
            cc = "0" if st == 0 else f"v[{acc}:{acc+15}]"
            d = AF[st & 1] + 4 * nt2
            bfr = BF + 4 * st
            a(f"v_mfma_f32_32x32x16_bf16 v[{acc}:{acc+15}], v[{d}:{d+3}], v[{bfr}:{bfr+3}], {cc}")
    stamp(a, 2)
    for nt2 in range(2):
        acc = ACC[nt2]
        pack(a, acc, acc)
        for p in range(2):
            b = acc + 4 * p
            a(f"v_permlane32_swap_b32 v{b}, v{b+2}")
            a(f"v_permlane32_swap_b32 v{b+1}, v{b+3}")
            a(f"buffer_store_dwordx4 v[{b}:{b+3}], v10, s[28:31], s36 offen offset:{nt2*64 + p*32} {OUTSC}")
    stamp_out(a, 4, 2)
    a.label("K3_END")
    a("s_endpgm")
    return a.finish()


def desc(name, vgpr, sgpr):
    acc = (vgpr + 3) // 4 * 4
    return f""".amdhsa_kernel {name}
  .amdhsa_next_free_vgpr {vgpr}
  .amdhsa_next_free_sgpr {sgpr}
  .amdhsa_accum_offset {acc}
  .amdhsa_group_segment_fixed_size 0
  .amdhsa_kernarg_size 72
  .amdhsa_user_sgpr_count 2
  .amdhsa_user_sgpr_kernarg_segment_ptr 1
  .amdhsa_system_sgpr_workgroup_id_x 1
.end_amdhsa_kernel
"""


def main():
    out = HEADER
    out += f"; @launch kernel={KN} grid=(232,1,1) block=(512,1,1) lds={K1_LDS}\n"
    out += f"; @launch kernel={KN} grid=(256,1,1) block=(512,1,1) lds={K2_LDS}\n"
    out += f"; @launch kernel={KN} grid=(224,1,1) block=(512,1,1) lds={K3_LDS}\n"
    out += '.amdgcn_target "amdgcn-amd-amdhsa--gfx950"\n.text\n'
    out += k1()
    out += k2()
    out += k3()
    out += "CODE_END:\n"
    out += '.section .rodata,"a"\n.p2align 6\n'
    out += desc(KN, 240, 102)
    args = [x for x in sys.argv[1:] if not x.startswith("--")]
    path = args[0] if args else f"cdna_kernels/{NAME}.s"
    open(path, "w").write(out)


main()
```
